```python
import torch

def _softmax(x, axis=-1):
    return torch.softmax(x, dim=axis)
def _gelu(x):
    return torch.nn.functional.gelu(x, approximate="tanh")
def _silu(x):
    return torch.nn.functional.silu(x)
def _sigmoid(x):
    return torch.sigmoid(x)
def _layernorm(x, axis=-1, eps=1e-5):
    m = x.mean(dim=axis, keepdim=True)
    v = x.var(dim=axis, keepdim=True, unbiased=False)
    return (x - m) / torch.sqrt(v + eps)
def _scatter_add(tgt, idx, src, axis=0):
    return tgt.clone().index_add_(axis, idx, src)
def _segment_sum(src, seg, n):
    out = torch.zeros((n,) + src.shape[1:], dtype=src.dtype)
    return out.index_add_(0, seg, src)
def _pad(x, pw):
    flat = tuple(v for pair in reversed(pw) for v in pair)
    return torch.nn.functional.pad(x, flat)

kernel_name = 'gather_scatter__edge_featured_mpnn_gatedgcn__graph'

def setup_inputs():

    _w = (lambda a: (lambda t: t.to(torch.bfloat16) if t.is_floating_point() else t)(torch.as_tensor(a)))
    N, deg, D, De = 50000, 16, 64, max(16, 1)
    E = N * deg
    return {
        "x": _w((lambda *s: torch.randn(*s, dtype=torch.bfloat16) * 0.4)(N, D)),
        "e_attr": _w((lambda *s: torch.randn(*s, dtype=torch.bfloat16) * 0.8)(E, De)),
        "src": _w((lambda lo, hi, *s: torch.randint(lo, hi, s))(0, N, E).to(torch.int64)),
        "dst": _w((lambda lo, hi, *s: torch.randint(lo, hi, s))(0, N, E).to(torch.int64)),
        "w_a": _w((lambda *s: torch.randn(*s, dtype=torch.bfloat16) * 0.8)(D, D)),
        "w_b": _w((lambda *s: torch.randn(*s, dtype=torch.bfloat16) * 0.4)(D, D)),
        "w_c": _w((lambda *s: torch.randn(*s, dtype=torch.bfloat16) * 0.8)(De, D)),
        "w_u": _w((lambda *s: torch.randn(*s, dtype=torch.bfloat16) * 0.05)(D, D)),
        "w_v": _w((lambda *s: torch.randn(*s, dtype=torch.bfloat16) * 0.05)(D, D)),
    }

def reference(x, e_attr, src, dst, w_a, w_b, w_c, w_u, w_v):
    N, D = x.shape
    hv = x @ w_v
    g = x[dst] @ w_a + x[src] @ w_b + e_attr @ w_c
    eta = _sigmoid(g)
    denom = _segment_sum(eta, dst, N) + 1e-6
    eta_n = eta / denom[dst]
    agg = _segment_sum(eta_n * hv[src], dst, N)
    z = x @ w_u + agg
    relu_z = torch.where(z > 0, z, 0 * z)
    return x + relu_z
```

```python
import re

TRANS = ("v_exp_f32", "v_rcp_f32", "v_log_f32", "v_rsq_f32", "v_sqrt_f32", "v_sin_f32", "v_cos_f32")

_tok = re.compile(r"\b([vs])\[(\d+):(\d+)\]|\b([vs])(\d+)\b|\b(vcc|exec)\b")


def regs_of(opnd):
    V, S = set(), set()
    for m in _tok.finditer(opnd):
        if m.group(1):
            r = range(int(m.group(2)), int(m.group(3)) + 1)
            (V if m.group(1) == "v" else S).update(r)
        elif m.group(4):
            (V if m.group(4) == "v" else S).add(int(m.group(5)))
        else:
            S.add(m.group(6))
    return V, S


class Asm:
    def __init__(self):
        self.lines = []
        self.slot = 0
        self.reset()

    def reset(self):
        self.mfma_w = {}
        self.valu_w = {}
        self.trans_w = {}
        self.valu_sw = {}
        self.store_d = {}
        self.mfma_c = {}

    def raw(self, text):
        self.lines.append(text)

    def comment(self, text):
        self.lines.append("    ; " + text)

    def nop(self, n):
        while n > 0:
            k = min(n, 16)
            self.lines.append(f"    s_nop {k-1}")
            self.slot += k
            n -= k

    def flush(self):
        need = 0
        for d, w in ((self.mfma_w, 8), (self.valu_w, 2), (self.trans_w, 1), (self.valu_sw, 5),
                     (self.store_d, 2), (self.mfma_c, 3)):
            for k, val in d.items():
                s = val[0] if isinstance(val, tuple) else val
                need = max(need, w - (self.slot - s - 1))
        if need > 0:
            self.nop(need)
        self.reset()

    def label(self, name):
        self.flush()
        self.lines.append(f"{name}:")

    def branch(self, text):
        self.flush()
        self.lines.append("    " + text)
        self.slot += 1

    def __call__(self, text):
        text = text.strip()
        mn = text.split()[0]
        rest = text[len(mn):]
        ops = [o.strip() for o in rest.split(",")]
        is_mfma = mn.startswith("v_mfma")
        is_valu = mn.startswith("v_") and not is_mfma
        is_vmem = mn.startswith(("buffer_", "global_"))
        is_ds = mn.startswith("ds_")
        is_salu = mn.startswith("s_")
        dpp = "_dpp" in mn or "row_" in text
        RV, RS, WV, WS = set(), set(), set(), set()
        if is_vmem:
            store = "store" in mn or "atomic" in mn
            for i, o in enumerate(ops):
                v, s = regs_of(o)
                if i == 0 and not store:
                    WV |= v
                else:
                    RV |= v
                RS |= s
        elif is_ds:
            has_dst = ("read" in mn) or ("rtn" in mn) or ("permute" in mn) or ("swizzle" in mn)
            for i, o in enumerate(ops):
                v, s = regs_of(o)
                if i == 0 and has_dst:
                    WV |= v
                else:
                    RV |= v
        elif is_valu or is_mfma:
            for i, o in enumerate(ops):
                v, s = regs_of(o)
                if i == 0:
                    WV |= v
                    WS |= s
                    if mn.startswith(("v_fmac", "v_writelane")) or dpp:
                        RV |= v
                elif i == 1 and mn.startswith(("v_add_co", "v_sub_co", "v_addc_co", "v_subb_co")):
                    WS |= s
                else:
                    RV |= v
                    RS |= s
            if mn.startswith("v_cndmask") and len(ops) == 3:
                RS.add("vcc")
        need = 0

        def chk(d, keys, w):
            nonlocal need
            for k in keys:
                if k in d:
                    val = d[k]
                    s = val[0] if isinstance(val, tuple) else val
                    need = max(need, w - (self.slot - s - 1))

        if is_valu or is_vmem or is_ds:
            chk(self.mfma_w, RV | WV, 8)
        if is_mfma:
            a, b, c = regs_of(ops[1])[0], regs_of(ops[2])[0], regs_of(ops[3])[0]
            chk(self.mfma_w, a | b, 8)
            ct = tuple(sorted(c))
            for k in c:
                if k in self.mfma_w and self.mfma_w[k][1] != ct:
                    chk(self.mfma_w, [k], 8)
            dt = tuple(sorted(WV))
            for k in WV:
                if k in self.mfma_w and self.mfma_w[k][1] != dt:
                    chk(self.mfma_w, [k], 8)
                elif k in self.mfma_w and not c:
                    chk(self.mfma_w, [k], 8)
            chk(self.valu_w, a | b | c, 2)
        if is_valu:
            if mn not in TRANS:
                chk(self.trans_w, RV, 1)
            chk(self.valu_sw, RS, 2)
            if mn.startswith(("v_readlane", "v_writelane")):
                chk(self.valu_sw, RS, 4)
            if dpp or mn.startswith("v_permlane"):
                chk(self.valu_w, RV, 2)
            if mn.startswith(("v_readlane", "v_readfirstlane")):
                chk(self.valu_w, RV, 1)
            chk(self.store_d, WV, 2)
            chk(self.mfma_c, WV, 3)
        if is_vmem:
            chk(self.valu_sw, RS, 5)
        if is_salu:
            v, s = regs_of(rest)
            chk(self.valu_sw, s, 1)
        if need > 0:
            self.nop(need)
        self.lines.append("    " + text)
        if is_mfma:
            dt = tuple(sorted(WV))
            for k in WV:
                self.mfma_w[k] = (self.slot, dt)
                self.valu_w.pop(k, None)
            for k in regs_of(ops[3])[0]:
                self.mfma_c[k] = self.slot
        if is_valu:
            for k in WV:
                self.valu_w[k] = self.slot
                self.mfma_w.pop(k, None)
                if mn in TRANS:
                    self.trans_w[k] = self.slot
                else:
                    self.trans_w.pop(k, None)
            for k in WS:
                self.valu_sw[k] = self.slot
        if is_vmem and "store" in mn and ("x4" in mn or "x3" in mn):
            for k in regs_of(ops[0])[0]:
                self.store_d[k] = self.slot
        if (is_vmem or is_ds) and WV:
            for k in WV:
                self.valu_w.pop(k, None)
                self.trans_w.pop(k, None)
        if mn == "s_nop":
            self.slot += int(ops[0]) + 1
        else:
            self.slot += 1

    def text(self):
        return "\n".join(self.lines) + "\n"


class VAlloc:
    def __init__(self, start=0, limit=256):
        self.next = start
        self.limit = limit
        self.names = {}

    def alloc(self, name, n=1, align=1):
        b = (self.next + align - 1) // align * align
        self.next = b + n
        assert self.next <= self.limit, f"out of vgprs at {name}: {self.next}"
        self.names[name] = (b, n)
        return b


def vr(b, n=1):
    return f"v{b}" if n == 1 else f"v[{b}:{b+n-1}]"


def sr(b, n=1):
    return f"s{b}" if n == 1 else f"s[{b}:{b+n-1}]"
```

```python
import sys
from emit import Asm, VAlloc, vr, sr

N = 50000
E = 800000
P = 250
C = 3200
NG = 4000
NWG = 1000
QCAP = 512

WS_W = 0
OFF_WB, OFF_WV, OFF_WA, OFF_WU, OFF_WC = 0, 8192, 16384, 24576, 32768
WS_DESC = 65536
DESC_BYTES = P * NG * 4
WS_RECS = 4194304
RECS_BYTES = E * 8
MAGIC25 = 171798692
BIG = 0x40000000

HEADER = open("gather_scatter__edge_featured_mpnn_gatedgcn__graph.s.ref").read().split("; @launch")[0]


def srd(a, d, lo, hi, nbytes, add=0):
    if add:
        a(f"s_add_u32 s{d}, s{lo}, {add}")
        a(f"s_addc_u32 s{d+1}, s{hi}, 0")
    else:
        a(f"s_mov_b32 s{d}, s{lo}")
        a(f"s_mov_b32 s{d+1}, s{hi}")
    a(f"s_and_b32 s{d+1}, s{d+1}, 0xffff")
    a(f"s_mov_b32 s{d+2}, {nbytes}")
    a(f"s_mov_b32 s{d+3}, 0x00020000")


def wave_scan(a, v):
    for sh in (1, 2, 4, 8):
        a(f"v_add_u32_dpp v{v}, v{v}, v{v} row_shr:{sh} row_mask:0xf bank_mask:0xf bound_ctrl:0")
    a(f"v_add_u32_dpp v{v}, v{v}, v{v} row_bcast:15 row_mask:0xa bank_mask:0xf")
    a(f"v_add_u32_dpp v{v}, v{v}, v{v} row_bcast:31 row_mask:0xc bank_mask:0xf")


def gen_prep():
    a = Asm()
    a.raw(".globl prep_kernel\n.p2align 8\n.type prep_kernel,@function\nprep_kernel:")
    a(f"s_cmp_gt_u32 s2, {P}")
    a.branch("s_cbranch_scc1 PREP_END")
    a("s_load_dwordx4 s[4:7], s[0:1], 16")
    a("s_load_dwordx2 s[8:9], s[0:1], 88")
    a(f"s_cmp_eq_u32 s2, {P}")
    a.branch("s_cbranch_scc1 PREP_W")
    a("s_waitcnt lgkmcnt(0)")
    srd(a, 12, 6, 7, E * 4)
    srd(a, 16, 4, 5, E * 4)
    srd(a, 20, 8, 9, DESC_BYTES, WS_DESC)
    srd(a, 24, 8, 9, RECS_BYTES, WS_RECS)
    a(f"s_mul_i32 s3, s2, {C*4}")
    a("v_lshl_add_u32 v1, v0, 4, s3")
    a(f"v_cmp_gt_u32 vcc, {C//4}, v0")
    a("s_mov_b64 s[30:31], vcc")
    a(f"v_cmp_gt_u32 vcc, {NG//4}, v0")
    a("s_mov_b64 s[32:33], vcc")
    a("v_mov_b32 v40, 0")
    a("v_mov_b32 v41, 0")
    a("v_mov_b32 v42, 0")
    a("v_mov_b32 v43, 0")
    a("v_lshlrev_b32 v2, 4, v0")
    a("s_mov_b64 exec, s[30:31]")
    a.branch("s_cbranch_execz PREP_A")
    a("buffer_load_dwordx4 v[4:7], v1, s[12:15], 0 offen")
    a("buffer_load_dwordx4 v[8:11], v1, s[16:19], 0 offen")
    a.label("PREP_A")
    a("s_mov_b64 exec, s[32:33]")
    a.branch("s_cbranch_execz PREP_A2")
    a("ds_write_b128 v2, v[40:43]")
    a.label("PREP_A2")
    a("s_mov_b64 exec, -1")
    a("s_waitcnt lgkmcnt(0)")
    a("s_barrier")
    a("s_mov_b64 exec, s[30:31]")
    a.branch("s_cbranch_execz PREP_B")
    a(f"s_mov_b32 s34, {MAGIC25}")
    a("v_mov_b32 v3, 1")
    a("s_waitcnt vmcnt(0)")
    for i in range(4):
        a(f"v_lshlrev_b32 v{12+i}, 1, v{4+i}")
    for i in range(4):
        a(f"v_mul_hi_u32 v{12+i}, v{12+i}, s34")
    for i in range(4):
        a(f"v_mad_u32_u24 v{16+i}, v{12+i}, 25, 1")
    for i in range(4):
        a(f"v_lshrrev_b32 v{16+i}, 1, v{16+i}")
    for i in range(4):
        a(f"v_sub_u32 v{16+i}, v{4+i}, v{16+i}")
    for i in range(4):
        a(f"v_lshlrev_b32 v{12+i}, 2, v{12+i}")
    for i in range(4):
        a(f"ds_add_rtn_u32 v{20+i}, v{12+i}, v3")
    a(f"s_mul_i32 s35, s2, {C}")
    a("v_lshl_add_u32 v32, v0, 2, s35")
    for i in range(4):
        a(f"v_lshl_or_b32 v{24+2*i}, v{16+i}, 16, v{8+i}")
        a(f"v_add_u32 v{25+2*i}, {i}, v32")
    a("s_waitcnt lgkmcnt(0)")
    a.label("PREP_B")
    a("s_mov_b64 exec, -1")
    a("s_barrier")
    a("s_mov_b64 exec, s[32:33]")
    a.branch("s_cbranch_execz PREP_C")
    a("ds_read_b128 v[40:43], v2")
    a("s_waitcnt lgkmcnt(0)")
    a.label("PREP_C")
    a("s_mov_b64 exec, -1")
    a("v_add_u32 v44, v40, v41")
    a("v_add_u32 v45, v44, v42")
    a("v_add_u32 v46, v45, v43")
    a("v_mov_b32 v47, v46")
    wave_scan(a, 47)
    a("v_lshrrev_b32 v48, 6, v0")
    a("v_and_b32 v49, 63, v0")
    a("v_readfirstlane_b32 s36, v48")
    a("v_lshlrev_b32 v50, 2, v48")
    a(f"v_add_u32 v50, {NG*4}, v50")
    a("v_cmp_eq_u32 vcc, 63, v49")
    a("s_and_saveexec_b64 s[38:39], vcc")
    a("ds_write_b32 v50, v47")
    a("s_mov_b64 exec, -1")
    a("s_waitcnt lgkmcnt(0)")
    a("s_barrier")
    a("v_lshlrev_b32 v50, 2, v49")
    a(f"v_add_u32 v50, {NG*4}, v50")
    a("v_and_b32 v51, 15, v49")
    a("v_lshlrev_b32 v50, 2, v51")
    a(f"v_add_u32 v50, {NG*4}, v50")
    a("ds_read_b32 v52, v50")
    a("v_cmp_gt_u32 vcc, s36, v51")
    a("s_waitcnt lgkmcnt(0)")
    a("v_cndmask_b32 v52, 0, v52, vcc")
    for sh in (1, 2, 4, 8):
        a(f"v_add_u32_dpp v52, v52, v52 row_shr:{sh} row_mask:0xf bank_mask:0xf bound_ctrl:0")
    a("v_readlane_b32 s37, v52, 15")
    a("v_sub_u32 v47, v47, v46")
    a("v_add_u32 v47, s37, v47")
    a("v_mov_b32 v56, v47")
    a("v_add_u32 v57, v47, v40")
    a("v_add_u32 v58, v47, v44")
    a("v_add_u32 v59, v47, v45")
    for i in range(4):
        a(f"v_lshl_or_b32 v{60+i}, v{40+i}, 16, v{56+i}")
    a(f"s_mul_i32 s3, s2, {NG*4}")
    a("v_add_u32 v53, s3, v2")
    a("s_mov_b64 exec, s[32:33]")
    a.branch("s_cbranch_execz PREP_D")
    a("ds_write_b128 v2, v[56:59]")
    a("buffer_store_dwordx4 v[60:63], v53, s[20:23], 0 offen")
    a.label("PREP_D")
    a("s_mov_b64 exec, -1")
    a("s_waitcnt lgkmcnt(0)")
    a("s_barrier")
    a("s_mov_b64 exec, s[30:31]")
    a.branch("s_cbranch_execz PREP_END")
    for i in range(4):
        a(f"ds_read_b32 v{12+i}, v{12+i}")
    a(f"s_mul_i32 s35, s2, {C}")
    a("s_waitcnt lgkmcnt(0)")
    for i in range(4):
        a(f"v_add3_u32 v{12+i}, v{12+i}, v{20+i}, s35")
        a(f"v_lshlrev_b32 v{12+i}, 3, v{12+i}")
        a(f"buffer_store_dwordx2 v[{24+2*i}:{25+2*i}], v{12+i}, s[24:27], 0 offen")
    a.branch("s_branch PREP_END")

    a.label("PREP_W")
    a("s_load_dwordx4 s[12:15], s[0:1], 32")
    a("s_load_dwordx4 s[16:19], s[0:1], 48")
    a("s_load_dwordx2 s[20:21], s[0:1], 64")
    a("s_waitcnt lgkmcnt(0)")
    srd(a, 24, 8, 9, 65536)
    srd(a, 28, 12, 13, 8192)
    srd(a, 32, 14, 15, 8192)
    srd(a, 36, 16, 17, 2048)
    srd(a, 40, 18, 19, 8192)
    srd(a, 44, 20, 21, 8192)
    a("v_and_b32 v1, 15, v0")
    a("v_bfe_u32 v2, v0, 4, 2")
    a("v_bfe_u32 v3, v0, 6, 2")
    a("v_bfe_u32 v4, v0, 8, 1")
    a("v_lshlrev_b32 v5, 11, v2")
    a("v_lshl_add_u32 v5, v4, 10, v5")
    a("v_lshl_add_u32 v5, v1, 3, v5")
    a("v_lshl_add_u32 v5, v3, 1, v5")
    a("v_lshlrev_b32 v6, 4, v0")
    a("v_cmp_gt_u32 vcc, 512, v0")
    a("s_and_saveexec_b64 s[48:49], vcc")
    a.branch("s_cbranch_execz PREP_W2")
    for (sd, off) in ((32, OFF_WB), (44, OFF_WV), (28, OFF_WA), (40, OFF_WU)):
        for j in range(8):
            a(f"buffer_load_ushort v{8+j}, v5, s[{sd}:{sd+3}], 0 offen offset:{j*128}")
        a("s_waitcnt vmcnt(0)")
        for j in range(4):
            a(f"v_lshl_or_b32 v{16+j}, v{9+2*j}, 16, v{8+2*j}")
        a(f"s_mov_b32 s50, {off}")
        a("buffer_store_dwordx4 v[16:19], v6, s[24:27], s50 offen")
        a("s_waitcnt vmcnt(0)")
    a.label("PREP_W2")
    a("s_mov_b64 exec, -1")
    a("v_subrev_u32 v7, 512, v0")
    a("v_cmp_gt_u32 vcc, 256, v7")
    a("s_and_saveexec_b64 s[48:49], vcc")
    a.branch("s_cbranch_execz PREP_END")
    a("v_lshlrev_b32 v5, 9, v2")
    a("v_lshl_add_u32 v5, v1, 3, v5")
    a("v_lshl_add_u32 v5, v3, 1, v5")
    a("v_lshlrev_b32 v6, 3, v7")
    for j in range(4):
        a(f"buffer_load_ushort v{8+j}, v5, s[36:39], 0 offen offset:{j*128}")
    a("s_waitcnt vmcnt(0)")
    a("v_lshl_or_b32 v16, v9, 16, v8")
    a("v_lshl_or_b32 v17, v11, 16, v10")
    a(f"s_mov_b32 s50, {OFF_WC}")
    a("buffer_store_dwordx2 v[16:17], v6, s[24:27], s50 offen")
    a.label("PREP_END")
    a("s_endpgm")
    return a.text()


L_AP = 0
L_Q = 4352
L_REC = L_Q + QCAP * 4
L_DL = L_REC + (QCAP + 128) * 8
L_MASK = L_DL + (QCAP + 128) * 4
LDSW = L_MASK + (QCAP + 128) * 2
assert LDSW % 256 == 0, LDSW


def gen_main():
    a = Asm()
    R = VAlloc(0, 256)
    v_tid = R.alloc("tid")
    vL = R.alloc("lane")
    vI = R.alloc("i")
    vQ = R.alloc("q")
    vQ32 = R.alloc("q32")
    vQ8 = R.alloc("q8")
    vN16 = R.alloc("n16")
    vRecA = R.alloc("recaddr")
    vDlA = R.alloc("dladdr")
    vMkA = R.alloc("maskaddr")
    WB = R.alloc("WB", 32, 4)
    WV = R.alloc("WV", 32, 4)
    WC = R.alloc("WC", 8, 4)
    DEN = R.alloc("DEN", 16, 4)
    NUM = R.alloc("NUM", 16, 4)
    GB = R.alloc("GB", 60, 4)
    AP = R.alloc("AP", 32, 4)
    GH = R.alloc("GH", 16, 4)
    BE = R.alloc("BE", 4, 4)
    BP = R.alloc("BP", 4, 4)
    OH = R.alloc("OH", 4, 4)
    RC = R.alloc("RC", 4, 4)
    print("vgprs used:", R.next, file=sys.stderr)

    def gb(b, t):
        base = GB + 20 * b + 10 * t
        return base, base + 4, base + 8

    SX, SEA, SW, SD, SR_, SO = 8, 12, 16, 20, 24, 28
    s_wv, s_G, s_ns, s_nn, s_T, s_R, s_NS, s_lds, s_K, s_tmp, s_Tn = 36, 37, 38, 39, 40, 41, 42, 43, 44, 45, 46
    s_one = 48
    s_k1, s_k2, s_k3 = 50, 51, 52
    s_ex = 54

    a.raw(".globl main_kernel\n.p2align 8\n.type main_kernel,@function\nmain_kernel:")
    a(f"s_cmp_ge_u32 s2, {NWG}")
    a.branch("s_cbranch_scc1 MAIN_END")
    a("s_load_dwordx4 s[4:7], s[0:1], 0")
    a("s_load_dwordx2 s[32:33], s[0:1], 72")
    a("s_load_dwordx2 s[34:35], s[0:1], 88")
    a(f"v_lshrrev_b32 v{vL}, 6, v0")
    a(f"v_readfirstlane_b32 s{s_wv}, v{vL}")
    a(f"v_and_b32 v{vL}, 63, v0")
    a(f"v_and_b32 v{vI}, 15, v0")
    a(f"v_bfe_u32 v{vQ}, v0, 4, 2")
    a(f"v_lshlrev_b32 v{vQ32}, 5, v{vQ}")
    a(f"v_lshlrev_b32 v{vQ8}, 3, v{vQ}")
    a(f"s_lshl_b32 s{s_G}, s2, 2")
    a(f"s_add_u32 s{s_G}, s{s_G}, s{s_wv}")
    a(f"s_mul_i32 s{s_ns}, s{s_G}, 25")
    a(f"s_add_u32 s{s_nn}, s{s_ns}, 26")
    a(f"s_add_u32 s{s_ns}, s{s_ns}, 1")
    a(f"s_lshr_b32 s{s_ns}, s{s_ns}, 1")
    a(f"s_lshr_b32 s{s_nn}, s{s_nn}, 1")
    a(f"s_sub_u32 s{s_nn}, s{s_nn}, s{s_ns}")
    a(f"s_mul_i32 s{s_lds}, s{s_wv}, {LDSW}")
    a(f"s_mov_b32 s{s_K}, 0xbfb8aa3b")
    a(f"s_mov_b32 s{s_one}, 1.0")
    a(f"s_mov_b32 s{s_one+1}, 1.0")
    a(f"s_mov_b32 s{s_k1}, {64*NG*4}")
    a(f"s_mov_b32 s{s_k2}, {128*NG*4}")
    a(f"s_mov_b32 s{s_k3}, {192*NG*4}")
    a(f"v_lshlrev_b32 v{vN16}, 4, v{vI}")
    a(f"v_add_u32 v{vN16}, s{s_lds}, v{vN16}")
    a("s_waitcnt lgkmcnt(0)")
    srd(a, SX, 4, 5, N * 128)
    srd(a, SEA, 6, 7, E * 32)
    srd(a, SW, 34, 35, 65536)
    srd(a, SD, 34, 35, DESC_BYTES, WS_DESC)
    srd(a, SR_, 34, 35, RECS_BYTES, WS_RECS)
    srd(a, SO, 32, 33, N * 128)

    T = GB
    vD = T
    vtmp = T + 4
    XO = T + 8
    a(f"s_lshl_b32 s{s_tmp}, s{s_G}, 2")
    a(f"v_mul_u32_u24 v{vtmp}, {NG*4}, v{vL}")
    a(f"v_add_u32 v{vtmp}, s{s_tmp}, v{vtmp}")
    a(f"buffer_load_dword v{vD}, v{vtmp}, s[{SD}:{SD+3}], 0 offen")
    a(f"buffer_load_dword v{vD+1}, v{vtmp}, s[{SD}:{SD+3}], s{s_k1} offen")
    a(f"buffer_load_dword v{vD+2}, v{vtmp}, s[{SD}:{SD+3}], s{s_k2} offen")
    a(f"buffer_load_dword v{vD+3}, v{vtmp}, s[{SD}:{SD+3}], s{s_k3} offen")
    a(f"v_add_u32 v{vtmp+1}, s{s_ns}, v{vI}")
    a(f"v_lshl_add_u32 v{vtmp+1}, v{vtmp+1}, 7, v{vQ32}")
    a(f"buffer_load_dwordx4 {vr(XO,4)}, v{vtmp+1}, s[{SX}:{SX+3}], 0 offen")
    a(f"buffer_load_dwordx4 {vr(XO+4,4)}, v{vtmp+1}, s[{SX}:{SX+3}], 0 offen offset:16")
    a(f"v_lshlrev_b32 v{vtmp+2}, 4, v{vL}")
    a(f"v_lshlrev_b32 v{vtmp+3}, 3, v{vL}")
    a(f"s_mov_b32 s{s_tmp}, {OFF_WA}")
    for k in range(8):
        a(f"buffer_load_dwordx4 {vr(AP+4*k,4)}, v{vtmp+2}, s[{SW}:{SW+3}], s{s_tmp} offen offset:{(k*1024)&4095}")
        if k == 3:
            a(f"s_mov_b32 s{s_tmp}, {OFF_WA+4096}")
    for (base, off) in ((WB, OFF_WB), (WV, OFF_WV)):
        for k in range(8):
            if k % 4 == 0:
                a(f"s_mov_b32 s{s_tmp}, {off + k*1024}")
            a(f"buffer_load_dwordx4 {vr(base+4*k,4)}, v{vtmp+2}, s[{SW}:{SW+3}], s{s_tmp} offen offset:{(k%4)*1024}")
    a(f"s_mov_b32 s{s_tmp}, {OFF_WC}")
    for c in range(4):
        a(f"buffer_load_dwordx2 {vr(WC+2*c,2)}, v{vtmp+3}, s[{SW}:{SW+3}], s{s_tmp} offen offset:{c*512}")
    for k in range(16):
        a(f"v_mov_b32 v{DEN+k}, 0")
        a(f"v_mov_b32 v{NUM+k}, 0")
    a("s_waitcnt vmcnt(30)")
    vC = T + 16
    vS = T + 20
    vB = T + 24
    vTot = T + 28
    vInc = T + 29
    for k in range(4):
        a(f"v_lshrrev_b32 v{vC+k}, 16, v{vD+k}")
        a(f"v_and_b32 v{vS+k}, 0xffff, v{vD+k}")
    a(f"v_add_u32 v{vTot}, v{vC}, v{vC+1}")
    a(f"v_add3_u32 v{vTot}, v{vTot}, v{vC+2}, v{vC+3}")
    a(f"v_mov_b32 v{vInc}, v{vTot}")
    wave_scan(a, vInc)
    a(f"v_readlane_b32 s{s_T}, v{vInc}, 63")
    a(f"v_sub_u32 v{vB}, v{vInc}, v{vTot}")
    a(f"v_add_u32 v{vB+1}, v{vB}, v{vC}")
    a(f"v_add_u32 v{vB+2}, v{vB+1}, v{vC+1}")
    a(f"v_add_u32 v{vB+3}, v{vB+2}, v{vC+2}")
    for k in range(4):
        a(f"v_add_u32 v{vtmp}, {64*k}, v{vL}")
        a(f"v_mul_u32_u24 v{vtmp}, {C}, v{vtmp}")
        a(f"v_add_u32 v{vS+k}, v{vS+k}, v{vtmp}")
    a(f"s_mov_b32 s{s_R}, 0")

    a("s_waitcnt vmcnt(20)")
    for c in range(4):
        a(f"v_mfma_f32_16x16x32_bf16 {vr(GH+4*c,4)}, {vr(XO,4)}, {vr(AP+4*c,4)}, 0")
    for c in range(4):
        a(f"v_mfma_f32_16x16x32_bf16 {vr(GH+4*c,4)}, {vr(XO+4,4)}, {vr(AP+16+4*c,4)}, {vr(GH+4*c,4)}")
    vA = T + 32
    for r in range(4):
        for c in range(4):
            a(f"v_mul_f32 v{vA+4*r+c}, s{s_K}, v{GH+4*c+r}")
    a(f"v_lshl_add_u32 v{vtmp}, v{vQ}, 10, v{vN16}")
    for r in range(4):
        a(f"ds_write_b128 v{vtmp}, {vr(vA+4*r,4)} offset:{L_AP + r*256}")
    for k in range(4):
        a(f"v_mov_b32 v{vA+k}, 0")
    a(f"ds_write_b128 v{vN16}, {vr(vA,4)} offset:{L_AP + 16*256}")

    a(f"s_cmp_eq_u32 s{s_T}, 0")
    a.branch("s_cbranch_scc1 EPILOGUE")

    a.label("ROUND")
    a(f"s_sub_u32 s{s_Tn}, s{s_T}, s{s_R}")
    a(f"s_min_u32 s{s_Tn}, s{s_Tn}, {QCAP}")
    vi = T + 30
    vhi = T + 31
    vad = T + 48
    vval = T + 49
    for k in range(4):
        a(f"v_sub_u32 v{vi}, s{s_R}, v{vB+k}")
        a(f"v_add_u32 v{vhi}, {QCAP}, v{vi}")
        a(f"v_med3_i32 v{vi}, v{vi}, 0, v{vC+k}")
        a(f"v_med3_i32 v{vhi}, v{vhi}, 0, v{vC+k}")
        a(f"v_add_u32 v{vad}, v{vB+k}, v{vi}")
        a(f"v_subrev_u32 v{vad}, s{s_R}, v{vad}")
        a(f"v_lshlrev_b32 v{vad}, 2, v{vad}")
        a(f"v_add_u32 v{vad}, s{s_lds}, v{vad}")
        a(f"v_add_u32 v{vval}, v{vS+k}, v{vi}")
        a(f"v_lshlrev_b32 v{vval}, 3, v{vval}")
        a.label(f"EXP{k}")
        a(f"v_cmp_lt_i32 vcc, v{vi}, v{vhi}")
        a("s_and_b64 exec, exec, vcc")
        a.branch(f"s_cbranch_execz EXPD{k}")
        a(f"ds_write_b32 v{vad}, v{vval} offset:{L_Q}")
        a(f"v_add_u32 v{vi}, 1, v{vi}")
        a(f"v_add_u32 v{vad}, 4, v{vad}")
        a(f"v_add_u32 v{vval}, 8, v{vval}")
        a.branch(f"s_branch EXP{k}")
        a.label(f"EXPD{k}")
        a("s_mov_b64 exec, -1")
    NM = QCAP // 64
    vq = AP
    vrec = GH
    a(f"v_lshl_add_u32 v{vad}, v{vL}, 2, s{s_lds}")
    for m in range(NM):
        a(f"ds_read_b32 v{vq+m}, v{vad} offset:{L_Q + m*256}")
    a(f"v_mov_b32 v{vval}, {BIG}")
    a("s_waitcnt lgkmcnt(0)")
    for m in range(NM):
        a(f"v_add_u32 v{vi}, {64*m}, v{vL}")
        a(f"v_cmp_gt_u32 vcc, s{s_Tn}, v{vi}")
        a(f"v_cndmask_b32 v{vq+m}, v{vval}, v{vq+m}, vcc")
        a(f"buffer_load_dwordx2 {vr(vrec+2*m,2)}, v{vq+m}, s[{SR_}:{SR_+3}], 0 offen")
    vdum = T + 50
    a(f"v_mov_b32 v{vdum}, {BIG}")
    a(f"v_mov_b32 v{vdum+1}, {BIG}")
    a(f"v_add_u32 v{vi}, s{s_Tn}, v{vL}")
    a(f"v_lshl_add_u32 v{vad}, v{vi}, 3, s{s_lds}")
    a(f"ds_write_b64 v{vad}, {vr(vdum,2)} offset:{L_REC}")
    a(f"ds_write_b64 v{vad}, {vr(vdum,2)} offset:{L_REC+512}")
    a(f"v_lshl_add_u32 v{vad}, v{vi}, 2, s{s_lds}")
    a(f"v_mov_b32 v{vval}, {16*256}")
    a(f"ds_write_b32 v{vad}, v{vval} offset:{L_DL}")
    a(f"ds_write_b32 v{vad}, v{vval} offset:{L_DL+256}")
    a(f"v_lshl_add_u32 v{vad}, v{vi}, 1, s{s_lds}")
    a(f"v_mov_b32 v{vval}, 0")
    a(f"ds_write_b16 v{vad}, v{vval} offset:{L_MASK}")
    a(f"ds_write_b16 v{vad}, v{vval} offset:{L_MASK+128}")
    a("s_waitcnt vmcnt(0)")
    vt0 = T + 52
    vt2 = T + 54
    vt3 = T + 55
    for m in range(NM):
        a(f"v_add_u32 v{vi}, {64*m}, v{vL}")
        a(f"v_cmp_gt_u32 vcc, s{s_Tn}, v{vi}")
        a(f"s_and_b64 exec, exec, vcc")
        a.branch(f"s_cbranch_execz STG_DONE")
        w0, w1 = vrec + 2 * m, vrec + 2 * m + 1
        a(f"v_and_b32 v{vt0}, 0xffff, v{w0}")
        a(f"v_lshlrev_b32 v{vt0}, 7, v{vt0}")
        a(f"v_lshlrev_b32 v{vt0+1}, 5, v{w1}")
        a(f"v_lshrrev_b32 v{vt2}, 16, v{w0}")
        a(f"v_lshlrev_b32 v{vt3}, v{vt2}, 1")
        a(f"v_lshlrev_b32 v{vt2}, 8, v{vt2}")
        a(f"v_lshl_add_u32 v{vad}, v{vi}, 3, s{s_lds}")
        a(f"ds_write_b64 v{vad}, {vr(vt0,2)} offset:{L_REC}")
        a(f"v_lshl_add_u32 v{vad}, v{vi}, 2, s{s_lds}")
        a(f"ds_write_b32 v{vad}, v{vt2} offset:{L_DL}")
        a(f"v_lshl_add_u32 v{vad}, v{vi}, 1, s{s_lds}")
        a(f"ds_write_b16 v{vad}, v{vt3} offset:{L_MASK}")
    a.label("STG_DONE")
    a("s_mov_b64 exec, -1")
    a(f"s_add_u32 s{s_NS}, s{s_Tn}, 31")
    a(f"s_lshr_b32 s{s_NS}, s{s_NS}, 5")
    a(f"v_lshl_add_u32 v{vRecA}, v{vI}, 3, s{s_lds}")
    a(f"v_lshl_add_u32 v{vDlA}, v{vQ}, 4, s{s_lds}")
    a(f"v_lshl_add_u32 v{vMkA}, v{vQ}, 3, s{s_lds}")

    def issue_gather(b, ahead):
        a(f"ds_read_b64 {vr(RC,2)}, v{vRecA} offset:{L_REC + ahead*256}")
        a(f"ds_read_b64 {vr(RC+2,2)}, v{vRecA} offset:{L_REC + ahead*256 + 128}")

    def finish_gather(b):
        for t in range(2):
            xa0, xa1, ea = gb(b, t)
            a(f"v_add_u32 v{RC+2*t}, v{RC+2*t}, v{vQ32}")
            a(f"v_add_u32 v{RC+2*t+1}, v{RC+2*t+1}, v{vQ8}")
            a(f"buffer_load_dwordx4 {vr(xa0,4)}, v{RC+2*t}, s[{SX}:{SX+3}], 0 offen")
            a(f"buffer_load_dwordx4 {vr(xa1,4)}, v{RC+2*t}, s[{SX}:{SX+3}], 0 offen offset:16")
            a(f"buffer_load_dwordx2 {vr(ea,2)}, v{RC+2*t+1}, s[{SEA}:{SEA+3}], 0 offen")

    issue_gather(0, 0)
    a("s_waitcnt lgkmcnt(0)")
    finish_gather(0)
    issue_gather(1, 1)
    a("s_waitcnt lgkmcnt(0)")
    finish_gather(1)

    def M(b, c, t, s):
        xa0, xa1, ea = gb(b, t)
        g, h = GH + 8 * s, GH + 8 * s + 4
        a(f"v_mfma_f32_16x16x32_bf16 {vr(g,4)}, {vr(xa0,4)}, {vr(WB+4*c,4)}, 0")
        a(f"v_mfma_f32_16x16x32_bf16 {vr(h,4)}, {vr(xa0,4)}, {vr(WV+4*c,4)}, 0")
        a(f"v_mfma_f32_16x16x32_bf16 {vr(g,4)}, {vr(xa1,4)}, {vr(WB+16+4*c,4)}, {vr(g,4)}")
        a(f"v_mfma_f32_16x16x32_bf16 {vr(h,4)}, {vr(xa1,4)}, {vr(WV+16+4*c,4)}, {vr(h,4)}")
        a(f"v_mfma_f32_16x16x16_bf16 {vr(g,4)}, {vr(ea,2)}, {vr(WC+2*c,2)}, {vr(g,4)}")

    def V(c, t, s):
        g, h = GH + 8 * s, GH + 8 * s + 4
        for r in range(4):
            a(f"v_fma_f32 v{g+r}, v{g+r}, s{s_K}, v{AP+16*t+4*r+c}")
        for r in range(4):
            a(f"v_exp_f32 v{g+r}, v{g+r}")
        a(f"v_pk_add_f32 {vr(g,2)}, {vr(g,2)}, s[{s_one}:{s_one+1}]")
        a(f"v_pk_add_f32 {vr(g+2,2)}, {vr(g+2,2)}, s[{s_one}:{s_one+1}]")
        for r in range(4):
            a(f"v_rcp_f32 v{g+r}, v{g+r}")
        a(f"v_pk_mul_f32 {vr(h,2)}, {vr(h,2)}, {vr(g,2)}")
        a(f"v_pk_mul_f32 {vr(h+2,2)}, {vr(h+2,2)}, {vr(g+2,2)}")
        a(f"v_cvt_pk_bf16_f32 v{BE+2*t}, v{g}, v{g+1}")
        a(f"v_cvt_pk_bf16_f32 v{BE+2*t+1}, v{g+2}, v{g+3}")
        a(f"v_cvt_pk_bf16_f32 v{BP+2*t}, v{h}, v{h+1}")
        a(f"v_cvt_pk_bf16_f32 v{BP+2*t+1}, v{h+2}, v{h+3}")

    def Rd(c):
        a(f"v_mfma_f32_16x16x32_bf16 {vr(DEN+4*c,4)}, {vr(OH,4)}, {vr(BE,4)}, {vr(DEN+4*c,4)}")
        a(f"v_mfma_f32_16x16x32_bf16 {vr(NUM+4*c,4)}, {vr(OH,4)}, {vr(BP,4)}, {vr(NUM+4*c,4)}")

    def step(b):
        nb = (b + 2) % 3
        issue_gather(nb, 2)
        a(f"ds_read_b128 {vr(GH,4)}, v{vDlA} offset:{L_DL}")
        a(f"ds_read_b128 {vr(GH+4,4)}, v{vDlA} offset:{L_DL+64}")
        a(f"ds_read_b64 {vr(OH,2)}, v{vMkA} offset:{L_MASK}")
        a(f"ds_read_b64 {vr(OH+2,2)}, v{vMkA} offset:{L_MASK+32}")
        a("s_waitcnt lgkmcnt(4)")
        finish_gather(nb)
        a("s_waitcnt lgkmcnt(2)")
        for k in range(8):
            a(f"v_add_u32 v{AP+4*k}, v{GH+k}, v{vN16}")
        for k in range(8):
            a(f"ds_read_b128 {vr(AP+4*k,4)}, v{AP+4*k} offset:{L_AP}")
        a("s_waitcnt lgkmcnt(8)")
        for k in range(4):
            a(f"v_lshrrev_b32 v{OH+k}, v{vI}, v{OH+k}")
        for k in range(4):
            a(f"v_and_b32 v{OH+k}, 0x10001, v{OH+k}")
        for k in range(4):
            a(f"v_mul_u32_u24 v{OH+k}, 0x3f80, v{OH+k}")
        a(f"v_add_u32 v{vRecA}, 256, v{vRecA}")
        a(f"v_add_u32 v{vDlA}, 128, v{vDlA}")
        a(f"v_add_u32 v{vMkA}, 64, v{vMkA}")
        a("s_waitcnt vmcnt(12)")
        units = [(c, t) for c in range(4) for t in range(2)]
        M(b, units[0][0], units[0][1], 0)
        for k, (c, t) in enumerate(units):
            if k + 1 < len(units):
                M(b, units[k + 1][0], units[k + 1][1], (k + 1) % 2)
            if k == 0:
                a("s_waitcnt lgkmcnt(0)")
            V(c, t, k % 2)
            if t == 1:
                Rd(c)

    a.label("LOOP")
    for b in range(3):
        step(b)
        a(f"s_sub_u32 s{s_NS}, s{s_NS}, 1")
        a(f"s_cmp_eq_u32 s{s_NS}, 0")
        if b < 2:
            a.branch("s_cbranch_scc1 LOOP_DONE")
        else:
            a.branch("s_cbranch_scc0 LOOP")
    a.label("LOOP_DONE")
    a("s_waitcnt vmcnt(0)")
    a(f"s_add_u32 s{s_R}, s{s_R}, {QCAP}")
    a(f"s_cmp_ge_u32 s{s_R}, s{s_T}")
    a.branch("s_cbranch_scc1 EPILOGUE")
    a(f"s_lshl_b32 s{s_tmp}, s{s_G}, 2")
    a(f"v_mul_u32_u24 v{vtmp}, {NG*4}, v{vL}")
    a(f"v_add_u32 v{vtmp}, s{s_tmp}, v{vtmp}")
    a(f"buffer_load_dword v{vD}, v{vtmp}, s[{SD}:{SD+3}], 0 offen")
    a(f"buffer_load_dword v{vD+1}, v{vtmp}, s[{SD}:{SD+3}], s{s_k1} offen")
    a(f"buffer_load_dword v{vD+2}, v{vtmp}, s[{SD}:{SD+3}], s{s_k2} offen")
    a(f"buffer_load_dword v{vD+3}, v{vtmp}, s[{SD}:{SD+3}], s{s_k3} offen")
    a("s_waitcnt vmcnt(0)")
    for k in range(4):
        a(f"v_lshrrev_b32 v{vC+k}, 16, v{vD+k}")
        a(f"v_and_b32 v{vS+k}, 0xffff, v{vD+k}")
    a(f"v_add_u32 v{vTot}, v{vC}, v{vC+1}")
    a(f"v_add3_u32 v{vTot}, v{vTot}, v{vC+2}, v{vC+3}")
    a(f"v_mov_b32 v{vInc}, v{vTot}")
    wave_scan(a, vInc)
    a(f"v_sub_u32 v{vB}, v{vInc}, v{vTot}")
    a(f"v_add_u32 v{vB+1}, v{vB}, v{vC}")
    a(f"v_add_u32 v{vB+2}, v{vB+1}, v{vC+1}")
    a(f"v_add_u32 v{vB+3}, v{vB+2}, v{vC+2}")
    for k in range(4):
        a(f"v_add_u32 v{vtmp}, {64*k}, v{vL}")
        a(f"v_mul_u32_u24 v{vtmp}, {C}, v{vtmp}")
        a(f"v_add_u32 v{vS+k}, v{vS+k}, v{vtmp}")
    a.branch("s_branch ROUND")

    a.label("EPILOGUE")
    a("s_waitcnt vmcnt(0) lgkmcnt(0)")
    XD = T + 16
    vo = T + 24
    a(f"v_lshlrev_b32 v{vtmp+2}, 4, v{vL}")
    for k in range(8):
        if k % 4 == 0:
            a(f"s_mov_b32 s{s_tmp}, {OFF_WU + k*1024}")
        a(f"buffer_load_dwordx4 {vr(AP+4*k,4)}, v{vtmp+2}, s[{SW}:{SW+3}], s{s_tmp} offen offset:{(k%4)*1024}")
    a(f"v_add_u32 v{vtmp+1}, s{s_ns}, v{vI}")
    a(f"v_lshl_add_u32 v{vtmp+1}, v{vtmp+1}, 7, v{vQ32}")
    a(f"buffer_load_dwordx4 {vr(XO,4)}, v{vtmp+1}, s[{SX}:{SX+3}], 0 offen")
    a(f"buffer_load_dwordx4 {vr(XO+4,4)}, v{vtmp+1}, s[{SX}:{SX+3}], 0 offen offset:16")
    a(f"v_lshl_add_u32 v{vtmp}, v{vQ}, 2, s{s_ns}")
    a(f"v_lshlrev_b32 v{vtmp}, 7, v{vtmp}")
    a(f"v_lshl_add_u32 v{vtmp}, v{vI}, 3, v{vtmp}")
    for r in range(4):
        a(f"buffer_load_dwordx2 {vr(XD+2*r,2)}, v{vtmp}, s[{SX}:{SX+3}], 0 offen offset:{r*128}")
    a(f"v_mov_b32 v{vtmp+3}, {BIG}")
    for r in range(4):
        a(f"v_lshl_add_u32 v{vtmp+1}, v{vQ}, 2, {r}")
        a(f"v_cmp_gt_u32 vcc, s{s_nn}, v{vtmp+1}")
        a(f"v_add_u32 v{vo+r}, {r*128}, v{vtmp}")
        a(f"v_cndmask_b32 v{vo+r}, v{vtmp+3}, v{vo+r}, vcc")
    a(f"s_mov_b32 s{s_tmp}, 0x358637bd")
    for k in range(16):
        a(f"v_add_f32 v{DEN+k}, s{s_tmp}, v{DEN+k}")
    for k in range(16):
        a(f"v_rcp_f32 v{DEN+k}, v{DEN+k}")
    a("s_waitcnt vmcnt(4)")
    for c in range(4):
        a(f"v_mfma_f32_16x16x32_bf16 {vr(GH+4*c,4)}, {vr(XO,4)}, {vr(AP+4*c,4)}, 0")
    for c in range(4):
        a(f"v_mfma_f32_16x16x32_bf16 {vr(GH+4*c,4)}, {vr(XO+4,4)}, {vr(AP+16+4*c,4)}, {vr(GH+4*c,4)}")
    for k in range(16):
        a(f"v_fma_f32 v{GH+k}, v{NUM+k}, v{DEN+k}, v{GH+k}")
    for k in range(16):
        a(f"v_max_f32 v{GH+k}, 0, v{GH+k}")
    a("s_waitcnt vmcnt(0)")
    vx = T + 28
    vp = T + 32
    for r in range(4):
        a(f"v_lshlrev_b32 v{vx}, 16, v{XD+2*r}")
        a(f"v_and_b32 v{vx+1}, 0xffff0000, v{XD+2*r}")
        a(f"v_lshlrev_b32 v{vx+2}, 16, v{XD+2*r+1}")
        a(f"v_and_b32 v{vx+3}, 0xffff0000, v{XD+2*r+1}")
        for c in range(4):
            a(f"v_add_f32 v{vx+c}, v{vx+c}, v{GH+4*c+r}")
        a(f"v_cvt_pk_bf16_f32 v{vp+2*r}, v{vx}, v{vx+1}")
        a(f"v_cvt_pk_bf16_f32 v{vp+2*r+1}, v{vx+2}, v{vx+3}")
        a(f"buffer_store_dwordx2 {vr(vp+2*r,2)}, v{vo+r}, s[{SO}:{SO+3}], 0 offen")
    a.label("MAIN_END")
    a("s_endpgm")
    return a.text()


def kd(name, vgpr, sgpr):
    acc = (vgpr + 3) // 4 * 4
    return f""".amdhsa_kernel {name}
  .amdhsa_next_free_vgpr {vgpr}
  .amdhsa_next_free_sgpr {sgpr}
  .amdhsa_accum_offset {acc}
  .amdhsa_group_segment_fixed_size 0
  .amdhsa_kernarg_size 96
  .amdhsa_user_sgpr_count 2
  .amdhsa_user_sgpr_kernarg_segment_ptr 1
  .amdhsa_system_sgpr_workgroup_id_x 1
.end_amdhsa_kernel
"""


def main():
    out = HEADER
    out += f"; @launch kernel=prep_kernel grid=({P+1},1,1) block=(1024,1,1) lds={NG*4+64}\n"
    out += f"; @launch kernel=main_kernel grid=({NWG},1,1) block=(256,1,1) lds={4*LDSW}\n"
    out += '.amdgcn_target "amdgcn-amd-amdhsa--gfx950"\n.text\n'
    out += gen_prep()
    out += gen_main()
    out += '.section .rodata,"a"\n.p2align 6\n'
    out += kd("prep_kernel", 64, 64)
    out += ".p2align 6\n"
    out += kd("main_kernel", 256, 64)
    path = sys.argv[1] if len(sys.argv) > 1 else "gather_scatter__edge_featured_mpnn_gatedgcn__graph.s"
    open(path, "w").write(out)


if __name__ == "__main__":
    main()
```

```python
import re

TRANS = ("v_exp_f32", "v_rcp_f32", "v_log_f32", "v_rsq_f32", "v_sqrt_f32", "v_sin_f32", "v_cos_f32")

_tok = re.compile(r"\b([vs])\[(\d+):(\d+)\]|\b([vs])(\d+)\b|\b(vcc|exec)\b")


def regs_of(opnd):
    V, S = set(), set()
    for m in _tok.finditer(opnd):
        if m.group(1):
            r = range(int(m.group(2)), int(m.group(3)) + 1)
            (V if m.group(1) == "v" else S).update(r)
        elif m.group(4):
            (V if m.group(4) == "v" else S).add(int(m.group(5)))
        else:
            S.add(m.group(6))
    return V, S


class Asm:
    def __init__(self):
        self.lines = []
        self.slot = 0
        self.reset()

    def reset(self):
        self.mfma_w = {}
        self.valu_w = {}
        self.trans_w = {}
        self.valu_sw = {}
        self.store_d = {}
        self.mfma_c = {}

    def raw(self, text):
        self.lines.append(text)

    def comment(self, text):
        self.lines.append("    ; " + text)

    def nop(self, n):
        while n > 0:
            k = min(n, 16)
            self.lines.append(f"    s_nop {k-1}")
            self.slot += k
            n -= k

    def flush(self):
        need = 0
        for d, w in ((self.mfma_w, 12), (self.valu_w, 2), (self.trans_w, 1), (self.valu_sw, 5),
                     (self.store_d, 2), (self.mfma_c, 7)):
            for k, val in d.items():
                s = val[0] if isinstance(val, tuple) else val
                need = max(need, w - (self.slot - s - 1))
        if need > 0:
            self.nop(need)
        self.reset()

    def label(self, name):
        self.flush()
        self.lines.append(f"{name}:")

    def branch(self, text):
        self.flush()
        self.lines.append("    " + text)
        self.slot += 1

    def __call__(self, text):
        text = text.strip()
        mn = text.split()[0]
        rest = text[len(mn):]
        ops = [o.strip() for o in rest.split(",")]
        is_mfma = mn.startswith("v_mfma")
        is_valu = mn.startswith("v_") and not is_mfma
        is_vmem = mn.startswith(("buffer_", "global_"))
        is_ds = mn.startswith("ds_")
        is_salu = mn.startswith("s_")
        dpp = "_dpp" in mn or "row_" in text
        RV, RS, WV, WS = set(), set(), set(), set()
        if is_vmem:
            store = "store" in mn or "atomic" in mn
            for i, o in enumerate(ops):
                v, s = regs_of(o)
                if i == 0 and not store:
                    WV |= v
                else:
                    RV |= v
                RS |= s
        elif is_ds:
            has_dst = ("read" in mn) or ("rtn" in mn) or ("permute" in mn) or ("swizzle" in mn)
            for i, o in enumerate(ops):
                v, s = regs_of(o)
                if i == 0 and has_dst:
                    WV |= v
                else:
                    RV |= v
        elif is_valu or is_mfma:
            for i, o in enumerate(ops):
                v, s = regs_of(o)
                if i == 0:
                    WV |= v
                    WS |= s
                    if mn.startswith(("v_fmac", "v_writelane")) or dpp:
                        RV |= v
                elif i == 1 and mn.startswith(("v_add_co", "v_sub_co", "v_addc_co", "v_subb_co")):
                    WS |= s
                else:
                    RV |= v
                    RS |= s
            if mn.startswith("v_cndmask") and len(ops) == 3:
                RS.add("vcc")
        need = 0

        def chk(d, keys, w):
            nonlocal need
            for k in keys:
                if k in d:
                    val = d[k]
                    s = val[0] if isinstance(val, tuple) else val
                    need = max(need, w - (self.slot - s - 1))

        if is_valu or is_vmem or is_ds:
            chk(self.mfma_w, RV | WV, 12)
        if is_mfma:
            a, b, c = regs_of(ops[1])[0], regs_of(ops[2])[0], regs_of(ops[3])[0]
            chk(self.mfma_w, a | b, 12)
            ct = tuple(sorted(c))
            for k in c:
                if k in self.mfma_w and self.mfma_w[k][1] != ct:
                    chk(self.mfma_w, [k], 12)
            dt = tuple(sorted(WV))
            for k in WV:
                if k in self.mfma_w and self.mfma_w[k][1] != dt:
                    chk(self.mfma_w, [k], 12)
                elif k in self.mfma_w and not c:
                    chk(self.mfma_w, [k], 12)
            chk(self.valu_w, a | b | c, 2)
        if is_valu:
            if mn not in TRANS:
                chk(self.trans_w, RV, 1)
            chk(self.valu_sw, RS, 2)
            if mn.startswith(("v_readlane", "v_writelane")):
                chk(self.valu_sw, RS, 4)
            if dpp or mn.startswith("v_permlane"):
                chk(self.valu_w, RV, 2)
            if mn.startswith(("v_readlane", "v_readfirstlane")):
                chk(self.valu_w, RV, 1)
            chk(self.store_d, WV, 2)
            chk(self.mfma_c, WV, 7)
        if is_vmem:
            chk(self.valu_sw, RS, 5)
        if is_salu:
            v, s = regs_of(rest)
            chk(self.valu_sw, s, 1)
        if need > 0:
            self.nop(need)
        self.lines.append("    " + text)
        if is_mfma:
            dt = tuple(sorted(WV))
            for k in WV:
                self.mfma_w[k] = (self.slot, dt)
                self.valu_w.pop(k, None)
            for k in regs_of(ops[3])[0]:
                self.mfma_c[k] = self.slot
        if is_valu:
            for k in WV:
                self.valu_w[k] = self.slot
                self.mfma_w.pop(k, None)
                if mn in TRANS:
                    self.trans_w[k] = self.slot
                else:
                    self.trans_w.pop(k, None)
            for k in WS:
                self.valu_sw[k] = self.slot
        if is_vmem and "store" in mn and ("x4" in mn or "x3" in mn):
            for k in regs_of(ops[0])[0]:
                self.store_d[k] = self.slot
        if (is_vmem or is_ds) and WV:
            for k in WV:
                self.valu_w.pop(k, None)
                self.trans_w.pop(k, None)
        if mn == "s_nop":
            self.slot += int(ops[0]) + 1
        else:
            self.slot += 1

    def text(self):
        return "\n".join(self.lines) + "\n"


class VAlloc:
    def __init__(self, start=0, limit=256):
        self.next = start
        self.limit = limit
        self.names = {}

    def alloc(self, name, n=1, align=1):
        b = (self.next + align - 1) // align * align
        self.next = b + n
        assert self.next <= self.limit, f"out of vgprs at {name}: {self.next}"
        self.names[name] = (b, n)
        return b


def vr(b, n=1):
    return f"v{b}" if n == 1 else f"v[{b}:{b+n-1}]"


def sr(b, n=1):
    return f"s{b}" if n == 1 else f"s[{b}:{b+n-1}]"
```

```python
import sys, os
from emit import Asm, VAlloc, vr, sr

N = 50000
E = 800000
P = 250
C = 3200
NG = 2000
GN = 25
WPW = 8
NWG = NG // WPW
QCAP = 512

OFF_WB, OFF_WV, OFF_WA, OFF_WU, OFF_WC = 0, 8192, 16384, 24576, 32768
WS_DESC = 65536
DESC_BYTES = P * NG * 4
WS_RECS = 4194304
RECS_BYTES = E * 8
MAGIC25 = 171798692
BIG = 0x40000000
EXP = os.environ.get("EXP", "")

HEADER = open("gather_scatter__edge_featured_mpnn_gatedgcn__graph.s.ref").read().split("; @launch")[0]


def srd(a, d, lo, hi, nbytes, add=0):
    if add:
        a(f"s_add_u32 s{d}, s{lo}, {add}")
        a(f"s_addc_u32 s{d+1}, s{hi}, 0")
    else:
        a(f"s_mov_b32 s{d}, s{lo}")
        a(f"s_mov_b32 s{d+1}, s{hi}")
    a(f"s_and_b32 s{d+1}, s{d+1}, 0xffff")
    a(f"s_mov_b32 s{d+2}, {nbytes}")
    a(f"s_mov_b32 s{d+3}, 0x00020000")


def wave_scan(a, v):
    for sh in (1, 2, 4, 8):
        a(f"v_add_u32_dpp v{v}, v{v}, v{v} row_shr:{sh} row_mask:0xf bank_mask:0xf bound_ctrl:0")
    a(f"v_add_u32_dpp v{v}, v{v}, v{v} row_bcast:15 row_mask:0xa bank_mask:0xf")
    a(f"v_add_u32_dpp v{v}, v{v}, v{v} row_bcast:31 row_mask:0xc bank_mask:0xf")


def gen_prep():
    a = Asm()
    a.raw(".globl prep_kernel\n.p2align 8\n.type prep_kernel,@function\nprep_kernel:")
    a(f"s_cmp_gt_u32 s2, {P}")
    a.branch("s_cbranch_scc1 PREP_END")
    a("s_load_dwordx4 s[4:7], s[0:1], 16")
    a("s_load_dwordx2 s[8:9], s[0:1], 88")
    a(f"s_cmp_eq_u32 s2, {P}")
    a.branch("s_cbranch_scc1 PREP_W")
    a("s_waitcnt lgkmcnt(0)")
    srd(a, 12, 6, 7, E * 4)
    srd(a, 16, 4, 5, E * 4)
    srd(a, 20, 8, 9, DESC_BYTES, WS_DESC)
    srd(a, 24, 8, 9, RECS_BYTES, WS_RECS)
    a(f"s_mul_i32 s3, s2, {C*4}")
    a("v_lshl_add_u32 v1, v0, 4, s3")
    a(f"v_cmp_gt_u32 vcc, {C//4}, v0")
    a("s_mov_b64 s[30:31], vcc")
    a(f"v_cmp_gt_u32 vcc, {NG//4}, v0")
    a("s_mov_b64 s[32:33], vcc")
    for k in range(4):
        a(f"v_mov_b32 v{40+k}, 0")
    a("v_lshlrev_b32 v2, 4, v0")
    a("s_mov_b64 exec, s[30:31]")
    a.branch("s_cbranch_execz PREP_A")
    a("buffer_load_dwordx4 v[4:7], v1, s[12:15], 0 offen")
    a("buffer_load_dwordx4 v[8:11], v1, s[16:19], 0 offen")
    a.label("PREP_A")
    a("s_mov_b64 exec, s[32:33]")
    a.branch("s_cbranch_execz PREP_A2")
    a("ds_write_b128 v2, v[40:43]")
    a.label("PREP_A2")
    a("s_mov_b64 exec, -1")
    a("s_waitcnt lgkmcnt(0)")
    a("s_barrier")
    a("s_mov_b64 exec, s[30:31]")
    a.branch("s_cbranch_execz PREP_B")
    a(f"s_mov_b32 s34, {MAGIC25}")
    a("v_mov_b32 v3, 1")
    a("s_waitcnt vmcnt(0)")
    for i in range(4):
        a(f"v_mul_hi_u32 v{12+i}, v{4+i}, s34")
    for i in range(4):
        a(f"v_mul_u32_u24 v{16+i}, {GN}, v{12+i}")
    for i in range(4):
        a(f"v_sub_u32 v{16+i}, v{4+i}, v{16+i}")
    for i in range(4):
        a(f"v_lshlrev_b32 v{12+i}, 2, v{12+i}")
    for i in range(4):
        a(f"ds_add_rtn_u32 v{20+i}, v{12+i}, v3")
    a(f"s_mul_i32 s35, s2, {C}")
    a("v_lshl_add_u32 v32, v0, 2, s35")
    for i in range(4):
        a(f"v_lshl_or_b32 v{24+2*i}, v{16+i}, 16, v{8+i}")
        a(f"v_add_u32 v{25+2*i}, {i}, v32")
    a("s_waitcnt lgkmcnt(0)")
    a.label("PREP_B")
    a("s_mov_b64 exec, -1")
    a("s_barrier")
    a("s_mov_b64 exec, s[32:33]")
    a.branch("s_cbranch_execz PREP_C")
    a("ds_read_b128 v[40:43], v2")
    a("s_waitcnt lgkmcnt(0)")
    a.label("PREP_C")
    a("s_mov_b64 exec, -1")
    a("v_add_u32 v44, v40, v41")
    a("v_add_u32 v45, v44, v42")
    a("v_add_u32 v46, v45, v43")
    a("v_mov_b32 v47, v46")
    wave_scan(a, 47)
    a("v_lshrrev_b32 v48, 6, v0")
    a("v_and_b32 v49, 63, v0")
    a("v_readfirstlane_b32 s36, v48")
    a("v_lshlrev_b32 v50, 2, v48")
    a(f"v_add_u32 v50, {NG*4}, v50")
    a("v_cmp_eq_u32 vcc, 63, v49")
    a("s_and_saveexec_b64 s[38:39], vcc")
    a("ds_write_b32 v50, v47")
    a("s_mov_b64 exec, -1")
    a("s_waitcnt lgkmcnt(0)")
    a("s_barrier")
    a("v_and_b32 v51, 15, v49")
    a("v_lshlrev_b32 v50, 2, v51")
    a(f"v_add_u32 v50, {NG*4}, v50")
    a("ds_read_b32 v52, v50")
    a("v_cmp_gt_u32 vcc, s36, v51")
    a("s_waitcnt lgkmcnt(0)")
    a("v_cndmask_b32 v52, 0, v52, vcc")
    for sh in (1, 2, 4, 8):
        a(f"v_add_u32_dpp v52, v52, v52 row_shr:{sh} row_mask:0xf bank_mask:0xf bound_ctrl:0")
    a("v_readlane_b32 s37, v52, 15")
    a("v_sub_u32 v47, v47, v46")
    a("v_add_u32 v47, s37, v47")
    a("v_mov_b32 v56, v47")
    a("v_add_u32 v57, v47, v40")
    a("v_add_u32 v58, v47, v44")
    a("v_add_u32 v59, v47, v45")
    for i in range(4):
        a(f"v_lshl_or_b32 v{60+i}, v{40+i}, 16, v{56+i}")
    a(f"s_mul_i32 s3, s2, {NG*4}")
    a("v_add_u32 v53, s3, v2")
    a("s_mov_b64 exec, s[32:33]")
    a.branch("s_cbranch_execz PREP_D")
    a("ds_write_b128 v2, v[56:59]")
    a("buffer_store_dwordx4 v[60:63], v53, s[20:23], 0 offen")
    a.label("PREP_D")
    a("s_mov_b64 exec, -1")
    a("s_waitcnt lgkmcnt(0)")
    a("s_barrier")
    a("s_mov_b64 exec, s[30:31]")
    a.branch("s_cbranch_execz PREP_END")
    for i in range(4):
        a(f"ds_read_b32 v{12+i}, v{12+i}")
    a(f"s_mul_i32 s35, s2, {C}")
    a("s_waitcnt lgkmcnt(0)")
    for i in range(4):
        a(f"v_add3_u32 v{12+i}, v{12+i}, v{20+i}, s35")
        a(f"v_lshlrev_b32 v{12+i}, 3, v{12+i}")
        a(f"buffer_store_dwordx2 v[{24+2*i}:{25+2*i}], v{12+i}, s[24:27], 0 offen")
    a.branch("s_branch PREP_END")

    a.label("PREP_W")
    a("s_load_dwordx4 s[12:15], s[0:1], 32")
    a("s_load_dwordx4 s[16:19], s[0:1], 48")
    a("s_load_dwordx2 s[20:21], s[0:1], 64")
    a("s_waitcnt lgkmcnt(0)")
    srd(a, 24, 8, 9, 65536)
    srd(a, 28, 12, 13, 8192)
    srd(a, 32, 14, 15, 8192)
    srd(a, 36, 16, 17, 2048)
    srd(a, 40, 18, 19, 8192)
    srd(a, 44, 20, 21, 8192)
    a("v_and_b32 v1, 31, v0")
    a("v_bfe_u32 v2, v0, 5, 1")
    a("v_bfe_u32 v3, v0, 6, 1")
    a("v_bfe_u32 v4, v0, 7, 2")
    a("v_lshlrev_b32 v5, 12, v2")
    a("v_lshl_add_u32 v5, v4, 10, v5")
    a("v_lshl_add_u32 v5, v1, 2, v5")
    a("v_lshl_add_u32 v5, v3, 1, v5")
    a("v_lshlrev_b32 v6, 4, v0")
    a("v_cmp_gt_u32 vcc, 512, v0")
    a("s_and_saveexec_b64 s[48:49], vcc")
    a.branch("s_cbranch_execz PREP_W2")
    for (sd, off) in ((32, OFF_WB), (44, OFF_WV), (28, OFF_WA), (40, OFF_WU)):
        for j in range(8):
            a(f"buffer_load_ushort v{8+j}, v5, s[{sd}:{sd+3}], 0 offen offset:{j*128}")
        a("s_waitcnt vmcnt(0)")
        for j in range(4):
            a(f"v_lshl_or_b32 v{16+j}, v{9+2*j}, 16, v{8+2*j}")
        a(f"s_mov_b32 s50, {off}")
        a("buffer_store_dwordx4 v[16:19], v6, s[24:27], s50 offen")
        a("s_waitcnt vmcnt(0)")
    a.label("PREP_W2")
    a("s_mov_b64 exec, -1")
    a("v_subrev_u32 v7, 512, v0")
    a("v_cmp_gt_u32 vcc, 128, v7")
    a("s_and_saveexec_b64 s[48:49], vcc")
    a.branch("s_cbranch_execz PREP_END")
    a("v_lshlrev_b32 v5, 10, v2")
    a("v_lshl_add_u32 v5, v1, 2, v5")
    a("v_lshl_add_u32 v5, v3, 1, v5")
    a("v_lshlrev_b32 v6, 4, v7")
    for j in range(8):
        a(f"buffer_load_ushort v{8+j}, v5, s[36:39], 0 offen offset:{j*128}")
    a("s_waitcnt vmcnt(0)")
    for j in range(4):
        a(f"v_lshl_or_b32 v{16+j}, v{9+2*j}, 16, v{8+2*j}")
    a(f"s_mov_b32 s50, {OFF_WC}")
    a("buffer_store_dwordx4 v[16:19], v6, s[24:27], s50 offen")
    a.label("PREP_END")
    a("s_endpgm")
    return a.text()


NSLOT = QCAP + 128
L_AP = 0
L_REC = 8192
L_Q = L_REC
L_DL = L_REC + NSLOT * 8
L_MLO = L_DL + NSLOT * 4
L_MHI = L_MLO + NSLOT * 2
LDSW = L_MHI + NSLOT * 2
assert LDSW % 256 == 0, LDSW
L_DSC = 0
L_WBASE = WPW * 256 * 4
LDS_TOTAL = L_WBASE + WPW * LDSW


def mfma32(a, d, x, y, c):
    a(f"v_mfma_f32_32x32x16_bf16 {vr(d,16)}, {vr(x,4)}, {vr(y,4)}, {c}")


def gen_main():
    a = Asm()
    R = VAlloc(0, 256)
    R.alloc("tid")
    vL = R.alloc("lane")
    vI = R.alloc("i")
    vH = R.alloc("h")
    vH64 = R.alloc("h64")
    vH16 = R.alloc("h16")
    vN4 = R.alloc("n4")
    vSh = R.alloc("sh")
    vRecA = R.alloc("recaddr")
    vDlA = R.alloc("dladdr")
    vMkA = R.alloc("maskaddr")
    RC = R.alloc("RC", 2, 2)
    WB = R.alloc("WB", 32, 4)
    WV = R.alloc("WV", 32, 4)
    WC = R.alloc("WC", 8, 4)
    DEN = R.alloc("DEN", 32, 4)
    NUM = R.alloc("NUM", 32, 4)
    G = R.alloc("G", 16, 4)
    H = R.alloc("H", 16, 4)
    AD = R.alloc("AD", 16, 4)
    OH = R.alloc("OH", 8, 4)
    GB = R.alloc("GB", 40, 4)
    print("vgprs used:", R.next, file=sys.stderr)

    SX, SEA, SW, SD, SR_, SO = 8, 12, 16, 20, 24, 28
    s_wv, s_G, s_ns, s_T, s_R, s_NS, s_lds, s_tmp, s_Tn = 36, 37, 38, 40, 41, 42, 43, 45, 46
    s_one = 48
    s_K = 50

    a.raw(".globl main_kernel\n.p2align 8\n.type main_kernel,@function\nmain_kernel:")
    a(f"s_cmp_ge_u32 s2, {NWG}")
    a.branch("s_cbranch_scc1 MAIN_END")
    a("s_load_dwordx4 s[4:7], s[0:1], 0")
    a("s_load_dwordx2 s[32:33], s[0:1], 72")
    a("s_load_dwordx2 s[34:35], s[0:1], 88")
    a(f"v_lshrrev_b32 v{vL}, 6, v0")
    a(f"v_readfirstlane_b32 s{s_wv}, v{vL}")
    a(f"v_and_b32 v{vL}, 63, v0")
    a(f"v_and_b32 v{vI}, 31, v0")
    a(f"v_bfe_u32 v{vH}, v0, 5, 1")
    a(f"v_lshlrev_b32 v{vH64}, 6, v{vH}")
    a(f"v_lshlrev_b32 v{vH16}, 4, v{vH}")
    a(f"v_and_b32 v{vSh}, 15, v0")
    a(f"s_lshl_b32 s{s_G}, s2, 3")
    a(f"s_add_u32 s{s_G}, s{s_G}, s{s_wv}")
    a(f"s_mul_i32 s{s_ns}, s{s_G}, {GN}")
    a(f"s_mul_i32 s{s_lds}, s{s_wv}, {LDSW}")
    a(f"s_add_u32 s{s_lds}, s{s_lds}, {L_WBASE}")
    a(f"s_mov_b32 s{s_K}, 0xbfb8aa3b")
    a(f"s_mov_b32 s{s_K+1}, 0xbfb8aa3b")
    a(f"s_mov_b32 s{s_one}, 1.0")
    a(f"s_mov_b32 s{s_one+1}, 1.0")
    a(f"v_lshlrev_b32 v{vN4}, 2, v{vI}")
    a(f"v_add_u32 v{vN4}, s{s_lds}, v{vN4}")
    a("s_waitcnt lgkmcnt(0)")
    srd(a, SX, 4, 5, N * 128)
    srd(a, SEA, 6, 7, E * 32)
    srd(a, SW, 34, 35, 65536)
    srd(a, SD, 34, 35, DESC_BYTES, WS_DESC)
    srd(a, SR_, 34, 35, RECS_BYTES, WS_RECS)
    srd(a, SO, 32, 33, N * 128)

    T = GB
    vD = T
    vtmp = T + 8
    XO = T + 12
    a(f"v_mul_u32_u24 v{vtmp}, {NG*4}, v0")
    a(f"s_lshl_b32 s{s_tmp}, s2, 5")
    a(f"v_add_u32 v{vtmp}, s{s_tmp}, v{vtmp}")
    a(f"buffer_load_dwordx4 {vr(vD,4)}, v{vtmp}, s[{SD}:{SD+3}], 0 offen")
    a(f"buffer_load_dwordx4 {vr(vD+4,4)}, v{vtmp}, s[{SD}:{SD+3}], 0 offen offset:16")
    a(f"v_add_u32 v{vtmp+1}, s{s_ns}, v{vI}")
    a(f"v_lshl_add_u32 v{vtmp+1}, v{vtmp+1}, 7, v{vH64}")
    for s in range(4):
        a(f"buffer_load_dwordx4 {vr(XO+4*s,4)}, v{vtmp+1}, s[{SX}:{SX+3}], 0 offen offset:{16*s}")
    a(f"v_lshlrev_b32 v{vtmp+2}, 4, v{vL}")
    WAt = NUM
    for (base, off) in ((WAt, OFF_WA), (WB, OFF_WB), (WV, OFF_WV)):
        for k in range(8):
            if k % 4 == 0:
                a(f"s_mov_b32 s{s_tmp}, {off + k*1024}")
            a(f"buffer_load_dwordx4 {vr(base+4*k,4)}, v{vtmp+2}, s[{SW}:{SW+3}], s{s_tmp} offen offset:{(k%4)*1024}")
    a(f"s_mov_b32 s{s_tmp}, {OFF_WC}")
    for c in range(2):
        a(f"buffer_load_dwordx4 {vr(WC+4*c,4)}, v{vtmp+2}, s[{SW}:{SW+3}], s{s_tmp} offen offset:{c*1024}")
    for k in range(32):
        a(f"v_mov_b32 v{DEN+k}, 0")
    a("s_waitcnt vmcnt(30)")
    a(f"v_lshlrev_b32 v{vtmp}, 2, v0")
    a(f"v_cmp_gt_u32 vcc, 256, v0")
    a("s_and_saveexec_b64 s[52:53], vcc")
    a.branch("s_cbranch_execz DSC_SKIP")
    for j in range(WPW):
        a(f"ds_write_b32 v{vtmp}, v{vD+j} offset:{L_DSC + j*1024}")
    a.label("DSC_SKIP")
    a("s_mov_b64 exec, -1")
    a("s_waitcnt vmcnt(18)")
    for c in range(2):
        d = G if c == 0 else H
        for s in range(4):
            mfma32(a, d, XO + 4 * s, WAt + 4 * (2 * s + c), "0" if s == 0 else vr(d, 16))
    a(f"v_lshl_add_u32 v{vtmp}, v{vH}, 10, v{vN4}")
    for c in range(2):
        d = G if c == 0 else H
        for r in range(16):
            row = 8 * (r >> 2) + (r & 3)
            a(f"ds_write_b32 v{vtmp}, v{d+r} offset:{L_AP + row*256 + c*128}")
    for k in range(32):
        a(f"v_mov_b32 v{NUM+k}, 0")
    a("s_waitcnt lgkmcnt(0)")
    a("s_barrier")

    vC = T + 28
    vS = T + 32
    vB = T + 36
    vTot = AD
    vInc = AD + 1
    vi = AD + 2
    vhi = AD + 3
    vad = AD + 4
    vval = AD + 5
    vdum = AD + 6
    vt0 = AD + 8
    vt2 = AD + 10
    vt3 = AD + 11
    vt4 = AD + 12

    def derive_desc():
        a(f"s_lshl_b32 s{s_tmp}, s{s_wv}, 10")
        a(f"v_lshl_add_u32 v{vtmp}, v{vL}, 2, s{s_tmp}")
        for k in range(4):
            a(f"ds_read_b32 v{vD+k}, v{vtmp} offset:{L_DSC + k*256}")
        a("s_waitcnt lgkmcnt(0)")
        for k in range(4):
            a(f"v_lshrrev_b32 v{vC+k}, 16, v{vD+k}")
            a(f"v_and_b32 v{vS+k}, 0xffff, v{vD+k}")
        a(f"v_add_u32 v{vTot}, v{vC}, v{vC+1}")
        a(f"v_add3_u32 v{vTot}, v{vTot}, v{vC+2}, v{vC+3}")
        a(f"v_mov_b32 v{vInc}, v{vTot}")
        wave_scan(a, vInc)
        a(f"v_readlane_b32 s{s_T}, v{vInc}, 63")
        a(f"v_sub_u32 v{vB}, v{vInc}, v{vTot}")
        a(f"v_add_u32 v{vB+1}, v{vB}, v{vC}")
        a(f"v_add_u32 v{vB+2}, v{vB+1}, v{vC+1}")
        a(f"v_add_u32 v{vB+3}, v{vB+2}, v{vC+2}")
        for k in range(4):
            a(f"v_add_u32 v{vtmp}, {64*k}, v{vL}")
            a(f"v_mul_u32_u24 v{vtmp}, {C}, v{vtmp}")
            a(f"v_add_u32 v{vS+k}, v{vS+k}, v{vtmp}")

    derive_desc()
    a(f"s_mov_b32 s{s_R}, 0")
    a(f"s_cmp_eq_u32 s{s_T}, 0")
    a.branch("s_cbranch_scc1 EPILOGUE")

    a.label("ROUND")
    a(f"s_sub_u32 s{s_Tn}, s{s_T}, s{s_R}")
    a(f"s_min_u32 s{s_Tn}, s{s_Tn}, {QCAP}")
    for k in range(4):
        a(f"v_sub_u32 v{vi}, s{s_R}, v{vB+k}")
        a(f"v_add_u32 v{vhi}, {QCAP}, v{vi}")
        a(f"v_med3_i32 v{vi}, v{vi}, 0, v{vC+k}")
        a(f"v_med3_i32 v{vhi}, v{vhi}, 0, v{vC+k}")
        a(f"v_add_u32 v{vad}, v{vB+k}, v{vi}")
        a(f"v_subrev_u32 v{vad}, s{s_R}, v{vad}")
        a(f"v_lshlrev_b32 v{vad}, 2, v{vad}")
        a(f"v_add_u32 v{vad}, s{s_lds}, v{vad}")
        a(f"v_add_u32 v{vval}, v{vS+k}, v{vi}")
        a(f"v_lshlrev_b32 v{vval}, 3, v{vval}")
        a.label(f"EXP{k}")
        a(f"v_cmp_lt_i32 vcc, v{vi}, v{vhi}")
        a("s_and_b64 exec, exec, vcc")
        a.branch(f"s_cbranch_execz EXPD{k}")
        a(f"ds_write_b32 v{vad}, v{vval} offset:{L_Q}")
        a(f"v_add_u32 v{vi}, 1, v{vi}")
        a(f"v_add_u32 v{vad}, 4, v{vad}")
        a(f"v_add_u32 v{vval}, 8, v{vval}")
        a.branch(f"s_branch EXP{k}")
        a.label(f"EXPD{k}")
        a("s_mov_b64 exec, -1")
    NM = QCAP // 64
    vq = OH
    vrec = G
    a(f"v_lshl_add_u32 v{vad}, v{vL}, 2, s{s_lds}")
    for m in range(NM):
        a(f"ds_read_b32 v{vq+m}, v{vad} offset:{L_Q + m*256}")
    a(f"v_mov_b32 v{vval}, {BIG}")
    a("s_waitcnt lgkmcnt(0)")
    for m in range(NM):
        a(f"v_add_u32 v{vi}, {64*m}, v{vL}")
        a(f"v_cmp_gt_u32 vcc, s{s_Tn}, v{vi}")
        a(f"v_cndmask_b32 v{vq+m}, v{vval}, v{vq+m}, vcc")
        a(f"buffer_load_dwordx2 {vr(vrec+2*m,2)}, v{vq+m}, s[{SR_}:{SR_+3}], 0 offen")
    a(f"v_mov_b32 v{vdum}, {BIG}")
    a(f"v_mov_b32 v{vdum+1}, {BIG}")
    a(f"v_add_u32 v{vi}, s{s_Tn}, v{vL}")
    a(f"v_lshl_add_u32 v{vad}, v{vi}, 3, s{s_lds}")
    a(f"ds_write_b64 v{vad}, {vr(vdum,2)} offset:{L_REC}")
    a(f"ds_write_b64 v{vad}, {vr(vdum,2)} offset:{L_REC+512}")
    a(f"v_lshl_add_u32 v{vad}, v{vi}, 2, s{s_lds}")
    a(f"v_mov_b32 v{vval}, {31*256}")
    a(f"ds_write_b32 v{vad}, v{vval} offset:{L_DL}")
    a(f"ds_write_b32 v{vad}, v{vval} offset:{L_DL+256}")
    a(f"v_lshl_add_u32 v{vad}, v{vi}, 1, s{s_lds}")
    a(f"v_mov_b32 v{vval}, 0")
    a(f"ds_write_b16 v{vad}, v{vval} offset:{L_MLO}")
    a(f"ds_write_b16 v{vad}, v{vval} offset:{L_MLO+128}")
    a(f"ds_write_b16 v{vad}, v{vval} offset:{L_MHI}")
    a(f"ds_write_b16 v{vad}, v{vval} offset:{L_MHI+128}")
    a("s_waitcnt vmcnt(0)")
    for m in range(NM):
        a(f"v_add_u32 v{vi}, {64*m}, v{vL}")
        a(f"v_cmp_gt_u32 vcc, s{s_Tn}, v{vi}")
        a(f"s_and_b64 exec, exec, vcc")
        a.branch(f"s_cbranch_execz STG_DONE")
        w0, w1 = vrec + 2 * m, vrec + 2 * m + 1
        a(f"v_and_b32 v{vt0}, 0xffff, v{w0}")
        a(f"v_lshlrev_b32 v{vt0}, 7, v{vt0}")
        a(f"v_lshlrev_b32 v{vt0+1}, 5, v{w1}")
        a(f"v_lshrrev_b32 v{vt2}, 16, v{w0}")
        a(f"v_lshlrev_b32 v{vt3}, v{vt2}, 1")
        a(f"v_lshrrev_b32 v{vt4}, 16, v{vt3}")
        a(f"v_lshlrev_b32 v{vt2}, 8, v{vt2}")
        a(f"v_lshl_add_u32 v{vad}, v{vi}, 3, s{s_lds}")
        a(f"ds_write_b64 v{vad}, {vr(vt0,2)} offset:{L_REC}")
        a(f"v_lshl_add_u32 v{vad}, v{vi}, 2, s{s_lds}")
        a(f"ds_write_b32 v{vad}, v{vt2} offset:{L_DL}")
        a(f"v_lshl_add_u32 v{vad}, v{vi}, 1, s{s_lds}")
        a(f"ds_write_b16 v{vad}, v{vt3} offset:{L_MLO}")
        a(f"ds_write_b16 v{vad}, v{vt4} offset:{L_MHI}")
    a.label("STG_DONE")
    a("s_mov_b64 exec, -1")
    a(f"s_add_u32 s{s_NS}, s{s_Tn}, 31")
    a(f"s_lshr_b32 s{s_NS}, s{s_NS}, 5")
    a(f"v_lshl_add_u32 v{vRecA}, v{vI}, 3, s{s_lds}")
    a(f"v_lshl_add_u32 v{vDlA}, v{vH}, 4, s{s_lds}")
    a(f"v_bfe_u32 v{vad}, v{vI}, 4, 1")
    a(f"v_mul_u32_u24 v{vad}, {L_MHI-L_MLO}, v{vad}")
    a(f"v_lshl_add_u32 v{vMkA}, v{vH}, 3, s{s_lds}")
    a(f"v_add_u32 v{vMkA}, v{vMkA}, v{vad}")

    if EXP == "noloop":
        a.branch("s_branch EPILOGUE")
    if EXP in ("nogather", "noea"):
        a(f"s_mov_b32 s{SEA+2}, 0")
    if EXP in ("nogather", "nox"):
        a(f"s_mov_b32 s{SX+2}, 0")

    def gathers(b):
        base = GB + 20 * b
        a(f"v_add_u32 v{RC}, v{RC}, v{vH64}")
        a(f"v_add_u32 v{RC+1}, v{RC+1}, v{vH16}")
        for s in range(4):
            a(f"buffer_load_dwordx4 {vr(base+4*s,4)}, v{RC}, s[{SX}:{SX+3}], 0 offen offset:{16*s}")
        a(f"buffer_load_dwordx4 {vr(base+16,4)}, v{RC+1}, s[{SEA}:{SEA+3}], 0 offen")

    a(f"ds_read_b64 {vr(RC,2)}, v{vRecA} offset:{L_REC}")
    a("s_waitcnt lgkmcnt(0)")
    gathers(0)

    def unit(b, c):
        base = GB + 20 * b
        for r in range(16):
            a(f"ds_read_b32 v{G+r}, v{AD+r} offset:{L_AP + c*128}")
        for s in range(4):
            mfma32(a, H, base + 4 * s, WV + 4 * (2 * s + c), "0" if s == 0 else vr(H, 16))
        a("s_waitcnt lgkmcnt(0)")
        for s in range(4):
            mfma32(a, G, base + 4 * s, WB + 4 * (2 * s + c), vr(G, 16))
        mfma32(a, G, base + 16, WC + 4 * c, vr(G, 16))
        for r in range(0, 16, 2):
            a(f"v_pk_mul_f32 {vr(G+r,2)}, {vr(G+r,2)}, s[{s_K}:{s_K+1}]")
        for r in range(16):
            a(f"v_exp_f32 v{G+r}, v{G+r}")
        for r in range(0, 16, 2):
            a(f"v_pk_add_f32 {vr(G+r,2)}, {vr(G+r,2)}, s[{s_one}:{s_one+1}]")
        for r in range(16):
            a(f"v_rcp_f32 v{G+r}, v{G+r}")
        for r in range(0, 16, 2):
            a(f"v_pk_mul_f32 {vr(H+r,2)}, {vr(H+r,2)}, {vr(G+r,2)}")
        for j in range(8):
            a(f"v_cvt_pk_bf16_f32 v{G+j}, v{G+2*j}, v{G+2*j+1}")
        for j in range(8):
            a(f"v_cvt_pk_bf16_f32 v{H+j}, v{H+2*j}, v{H+2*j+1}")
        for s in range(2):
            mfma32(a, DEN + 16 * c, OH + 4 * s, G + 4 * s, vr(DEN + 16 * c, 16))
            mfma32(a, NUM + 16 * c, OH + 4 * s, H + 4 * s, vr(NUM + 16 * c, 16))

    def step(b):
        a(f"ds_read_b64 {vr(RC,2)}, v{vRecA} offset:{L_REC + 256}")
        for q in range(4):
            a(f"ds_read_b128 {vr(AD+4*q,4)}, v{vDlA} offset:{L_DL + q*32}")
        for q in range(4):
            a(f"ds_read_b64 {vr(OH+2*q,2)}, v{vMkA} offset:{L_MLO + q*16}")
        a("s_waitcnt lgkmcnt(8)")
        gathers(1 - b)
        a("s_waitcnt lgkmcnt(4)")
        for k in range(16):
            a(f"v_add_u32 v{AD+k}, v{AD+k}, v{vN4}")
        a("s_waitcnt lgkmcnt(0)")
        for k in range(8):
            a(f"v_lshrrev_b32 v{OH+k}, v{vSh}, v{OH+k}")
        for k in range(8):
            a(f"v_and_b32 v{OH+k}, 0x10001, v{OH+k}")
        for k in range(8):
            a(f"v_mul_u32_u24 v{OH+k}, 0x3f80, v{OH+k}")
        a(f"v_add_u32 v{vRecA}, 256, v{vRecA}")
        a(f"v_add_u32 v{vDlA}, 128, v{vDlA}")
        a(f"v_add_u32 v{vMkA}, 64, v{vMkA}")
        a("s_waitcnt vmcnt(5)")
        unit(b, 0)
        unit(b, 1)

    a.label("LOOP")
    for b in range(2):
        step(b)
        a(f"s_sub_u32 s{s_NS}, s{s_NS}, 1")
        a(f"s_cmp_eq_u32 s{s_NS}, 0")
        if b < 1:
            a.branch("s_cbranch_scc1 LOOP_DONE")
        else:
            a.branch("s_cbranch_scc0 LOOP")
    a.label("LOOP_DONE")
    a("s_waitcnt vmcnt(0)")
    a(f"s_add_u32 s{s_R}, s{s_R}, {QCAP}")
    a(f"s_cmp_ge_u32 s{s_R}, s{s_T}")
    a.branch("s_cbranch_scc1 EPILOGUE")
    derive_desc()
    a.branch("s_branch ROUND")

    a.label("EPILOGUE")
    a("s_waitcnt vmcnt(0) lgkmcnt(0)")
    if EXP in ("nogather", "nox"):
        a(f"s_mov_b32 s{SX+2}, {N*128}")
    WUt = WB
    XD = WV
    VO = WV + 16
    a(f"v_lshlrev_b32 v{vtmp+2}, 4, v{vL}")
    for k in range(8):
        if k % 4 == 0:
            a(f"s_mov_b32 s{s_tmp}, {OFF_WU + k*1024}")
        a(f"buffer_load_dwordx4 {vr(WUt+4*k,4)}, v{vtmp+2}, s[{SW}:{SW+3}], s{s_tmp} offen offset:{(k%4)*1024}")
    a(f"v_add_u32 v{vtmp+1}, s{s_ns}, v{vI}")
    a(f"v_lshl_add_u32 v{vtmp+1}, v{vtmp+1}, 7, v{vH64}")
    for s in range(4):
        a(f"buffer_load_dwordx4 {vr(XO+4*s,4)}, v{vtmp+1}, s[{SX}:{SX+3}], 0 offen offset:{16*s}")
    a(f"v_lshl_add_u32 v{vtmp}, v{vH}, 2, s{s_ns}")
    a(f"v_lshlrev_b32 v{vtmp}, 7, v{vtmp}")
    a(f"v_lshl_add_u32 v{vtmp}, v{vI}, 2, v{vtmp}")
    for r in range(16):
        row = 8 * (r >> 2) + (r & 3)
        a(f"buffer_load_dword v{XD+r}, v{vtmp}, s[{SX}:{SX+3}], 0 offen offset:{row*128}")
    a(f"v_mov_b32 v{vtmp+3}, {BIG}")
    a(f"v_lshlrev_b32 v{vtmp+1}, 2, v{vH}")
    for r in range(16):
        row = 8 * (r >> 2) + (r & 3)
        a(f"v_cmp_gt_u32 vcc, {GN-row if GN-row>0 else 0}, v{vtmp+1}")
        a(f"v_add_u32 v{VO+r}, {row*128}, v{vtmp}")
        a(f"v_cndmask_b32 v{VO+r}, v{vtmp+3}, v{VO+r}, vcc")
    a(f"s_mov_b32 s{s_tmp}, 0x358637bd")
    for k in range(32):
        a(f"v_add_f32 v{DEN+k}, s{s_tmp}, v{DEN+k}")
    for k in range(32):
        a(f"v_rcp_f32 v{DEN+k}, v{DEN+k}")
    a("s_waitcnt vmcnt(16)")
    for c in range(2):
        d = G if c == 0 else H
        for s in range(4):
            mfma32(a, d, XO + 4 * s, WUt + 4 * (2 * s + c), "0" if s == 0 else vr(d, 16))
    for c in range(2):
        d = G if c == 0 else H
        for r in range(16):
            a(f"v_fma_f32 v{d+r}, v{NUM+16*c+r}, v{DEN+16*c+r}, v{d+r}")
        for r in range(16):
            a(f"v_max_f32 v{d+r}, 0, v{d+r}")
    a("s_waitcnt vmcnt(0)")
    for r in range(16):
        a(f"v_lshlrev_b32 v{AD}, 16, v{XD+r}")
        a(f"v_and_b32 v{AD+1}, 0xffff0000, v{XD+r}")
        a(f"v_add_f32 v{AD}, v{AD}, v{G+r}")
        a(f"v_add_f32 v{AD+1}, v{AD+1}, v{H+r}")
        a(f"v_cvt_pk_bf16_f32 v{XD+r}, v{AD}, v{AD+1}")
        a(f"buffer_store_dword v{XD+r}, v{VO+r}, s[{SO}:{SO+3}], 0 offen")
    a.label("MAIN_END")
    a("s_endpgm")
    return a.text()


def kd(name, vgpr, sgpr):
    acc = (vgpr + 3) // 4 * 4
    return f""".amdhsa_kernel {name}
  .amdhsa_next_free_vgpr {vgpr}
  .amdhsa_next_free_sgpr {sgpr}
  .amdhsa_accum_offset {acc}
  .amdhsa_group_segment_fixed_size 0
  .amdhsa_kernarg_size 96
  .amdhsa_user_sgpr_count 2
  .amdhsa_user_sgpr_kernarg_segment_ptr 1
  .amdhsa_system_sgpr_workgroup_id_x 1
.end_amdhsa_kernel
"""


def main():
    out = HEADER
    out += f"; @launch kernel=prep_kernel grid=({P+1},1,1) block=(1024,1,1) lds={NG*4+64}\n"
    out += f"; @launch kernel=main_kernel grid=({NWG},1,1) block=({64*WPW},1,1) lds={LDS_TOTAL}\n"
    out += '.amdgcn_target "amdgcn-amd-amdhsa--gfx950"\n.text\n'
    out += gen_prep()
    out += gen_main()
    out += '.section .rodata,"a"\n.p2align 6\n'
    out += kd("prep_kernel", 64, 64)
    out += ".p2align 6\n"
    out += kd("main_kernel", 256, 64)
    path = sys.argv[1] if len(sys.argv) > 1 else "gather_scatter__edge_featured_mpnn_gatedgcn__graph.s"
    open(path, "w").write(out)


if __name__ == "__main__":
    main()
```

```python
import sys, os
from emit import Asm, VAlloc, vr, sr

N = 50000
E = 800000
P = 250
C = 3200
NG = 2000
GN = 25
WPW = 8
NWG = NG // WPW
QCAP = 512

OFF_WB, OFF_WV, OFF_WA, OFF_WC, OFF_WU = 0, 8192, 16384, 24576, 32768
WS_DESC = 65536
DESC_BYTES = P * NG * 4
WS_RECS = 4194304
RECS_BYTES = E * 8
SL = 32
WS_SLOTS = 16 << 20
SLOTS_BYTES = NWG * P * SL * 8
MAGIC25 = 171798692
BIG = 0x40000000
EXP = os.environ.get("EXP", "")
FOLD = os.environ.get("FOLD", "1") == "1"
X2 = os.environ.get("X2", "")

HEADER = open("gather_scatter__edge_featured_mpnn_gatedgcn__graph.s.ref").read().split("; @launch")[0]


def srd(a, d, lo, hi, nbytes, add=0):
    if add:
        a(f"s_add_u32 s{d}, s{lo}, {add}")
        a(f"s_addc_u32 s{d+1}, s{hi}, 0")
    else:
        a(f"s_mov_b32 s{d}, s{lo}")
        a(f"s_mov_b32 s{d+1}, s{hi}")
    a(f"s_and_b32 s{d+1}, s{d+1}, 0xffff")
    a(f"s_mov_b32 s{d+2}, {nbytes}")
    a(f"s_mov_b32 s{d+3}, 0x00020000")


def wave_scan(a, v):
    for sh in (1, 2, 4, 8):
        a(f"v_add_u32_dpp v{v}, v{v}, v{v} row_shr:{sh} row_mask:0xf bank_mask:0xf bound_ctrl:0")
    a(f"v_add_u32_dpp v{v}, v{v}, v{v} row_bcast:15 row_mask:0xa bank_mask:0xf")
    a(f"v_add_u32_dpp v{v}, v{v}, v{v} row_bcast:31 row_mask:0xc bank_mask:0xf")


PL_STAGE = NG * 4 + 64
PREP_LDS = PL_STAGE + 4096 * 8


def gen_prep():
    a = Asm()
    a.raw(".globl prep_kernel\n.p2align 8\n.type prep_kernel,@function\nprep_kernel:")
    a(f"s_cmp_gt_u32 s2, {P}")
    a.branch("s_cbranch_scc1 PREP_END2")
    if X2 == "tl":
        a("s_memrealtime s[60:61]")
    a("s_load_dwordx4 s[4:7], s[0:1], 16")
    a("s_load_dwordx2 s[8:9], s[0:1], 88")
    a(f"s_cmp_eq_u32 s2, {P}")
    a.branch("s_cbranch_scc1 PREP_W")
    a("s_waitcnt lgkmcnt(0)")
    srd(a, 12, 6, 7, E * 4)
    srd(a, 16, 4, 5, E * 4)
    srd(a, 20, 8, 9, DESC_BYTES, WS_DESC)
    srd(a, 24, 8, 9, RECS_BYTES, WS_RECS)
    a(f"s_mul_i32 s3, s2, {C*4}")
    a("v_lshl_add_u32 v1, v0, 4, s3")
    a(f"v_cmp_gt_u32 vcc, {C//4}, v0")
    a("s_mov_b64 s[30:31], vcc")
    a(f"v_cmp_gt_u32 vcc, {NG//4}, v0")
    a("s_mov_b64 s[32:33], vcc")
    for k in range(4):
        a(f"v_mov_b32 v{40+k}, 0")
    a("v_lshlrev_b32 v2, 4, v0")
    a("s_mov_b64 exec, s[30:31]")
    a.branch("s_cbranch_execz PREP_A")
    a("buffer_load_dwordx4 v[4:7], v1, s[12:15], 0 offen")
    a("buffer_load_dwordx4 v[8:11], v1, s[16:19], 0 offen")
    a.label("PREP_A")
    a("s_mov_b64 exec, s[32:33]")
    a.branch("s_cbranch_execz PREP_A2")
    a("ds_write_b128 v2, v[40:43]")
    a.label("PREP_A2")
    a("s_mov_b64 exec, -1")
    a("s_waitcnt lgkmcnt(0)")
    a("s_barrier")
    a("s_mov_b64 exec, s[30:31]")
    a.branch("s_cbranch_execz PREP_B")
    a(f"s_mov_b32 s34, {MAGIC25}")
    a("v_mov_b32 v3, 1")
    a("s_waitcnt vmcnt(0)")
    for i in range(4):
        a(f"v_mul_hi_u32 v{12+i}, v{4+i}, s34")
    for i in range(4):
        a(f"v_mul_u32_u24 v{16+i}, {GN}, v{12+i}")
    for i in range(4):
        a(f"v_sub_u32 v{16+i}, v{4+i}, v{16+i}")
    for i in range(4):
        a(f"v_lshlrev_b32 v{12+i}, 2, v{12+i}")
    for i in range(4):
        a(f"ds_add_rtn_u32 v{20+i}, v{12+i}, v3")
    a(f"s_mul_i32 s35, s2, {C}")
    a("v_lshl_add_u32 v32, v0, 2, s35")
    for i in range(4):
        a(f"v_lshl_or_b32 v{24+2*i}, v{8+i}, 7, v{16+i}")
        a(f"v_lshrrev_b32 v33, 5, v{12+i}")
        a(f"v_lshl_or_b32 v{24+2*i}, v33, 23, v{24+2*i}")
        a(f"v_add_u32 v{25+2*i}, {i}, v32")
        a(f"v_bfe_u32 v33, v{12+i}, 2, 3")
        a(f"v_lshl_or_b32 v{25+2*i}, v{25+2*i}, 5, v33")
    a("s_waitcnt lgkmcnt(0)")
    a.label("PREP_B")
    a("s_mov_b64 exec, -1")
    a("s_barrier")
    a("s_mov_b64 exec, s[32:33]")
    a.branch("s_cbranch_execz PREP_C")
    a("ds_read_b128 v[40:43], v2")
    a("s_waitcnt lgkmcnt(0)")
    a.label("PREP_C")
    a("s_mov_b64 exec, -1")
    a("v_add_u32 v44, v40, v41")
    a("v_add_u32 v45, v44, v42")
    a("v_add_u32 v46, v45, v43")
    a("v_mov_b32 v47, v46")
    wave_scan(a, 47)
    a("v_lshrrev_b32 v48, 6, v0")
    a("v_and_b32 v49, 63, v0")
    a("v_readfirstlane_b32 s36, v48")
    a("v_lshlrev_b32 v50, 2, v48")
    a(f"v_add_u32 v50, {NG*4}, v50")
    a("v_cmp_eq_u32 vcc, 63, v49")
    a("s_and_saveexec_b64 s[38:39], vcc")
    a("ds_write_b32 v50, v47")
    a("s_mov_b64 exec, -1")
    a("s_waitcnt lgkmcnt(0)")
    a("s_barrier")
    a("v_and_b32 v51, 15, v49")
    a("v_lshlrev_b32 v50, 2, v51")
    a(f"v_add_u32 v50, {NG*4}, v50")
    a("ds_read_b32 v52, v50")
    a("v_cmp_gt_u32 vcc, s36, v51")
    a("s_waitcnt lgkmcnt(0)")
    a("v_cndmask_b32 v52, 0, v52, vcc")
    for sh in (1, 2, 4, 8):
        a(f"v_add_u32_dpp v52, v52, v52 row_shr:{sh} row_mask:0xf bank_mask:0xf bound_ctrl:0")
    a("v_readlane_b32 s37, v52, 15")
    a("v_sub_u32 v47, v47, v46")
    a("v_add_u32 v47, s37, v47")
    a("v_mov_b32 v56, v47")
    a("v_add_u32 v57, v47, v40")
    a("v_add_u32 v58, v47, v44")
    a("v_add_u32 v59, v47, v45")
    for i in range(4):
        a(f"v_lshl_or_b32 v{60+i}, v{40+i}, 16, v{56+i}")
    a("v_lshrrev_b32 v53, 1, v0")
    a(f"v_mul_u32_u24 v53, {P*32}, v53")
    a("v_and_b32 v54, 1, v0")
    a("v_lshl_add_u32 v53, v54, 4, v53")
    a("s_lshl_b32 s3, s2, 5")
    a("v_add_u32 v53, s3, v53")
    a("s_mov_b64 exec, s[32:33]")
    a.branch("s_cbranch_execz PREP_D")
    a("ds_write_b128 v2, v[56:59]")
    a("buffer_store_dwordx4 v[60:63], v53, s[20:23], 0 offen")
    a.label("PREP_D")
    a("s_mov_b64 exec, -1")
    a("s_waitcnt lgkmcnt(0)")
    a("s_barrier")
    a("s_mov_b64 exec, s[30:31]")
    a.branch("s_cbranch_execz PREP_E")
    for i in range(4):
        a(f"ds_read_b32 v{12+i}, v{12+i}")
    a("s_waitcnt lgkmcnt(0)")
    for i in range(4):
        a(f"v_add_u32 v{12+i}, v{12+i}, v{20+i}")
        a(f"v_lshlrev_b32 v{12+i}, 3, v{12+i}")
        a(f"ds_write_b64 v{12+i}, v[{24+2*i}:{25+2*i}] offset:{PL_STAGE}")
    a.label("PREP_E")
    a("s_mov_b64 exec, -1")
    a("s_waitcnt lgkmcnt(0)")
    a("s_barrier")
    srd(a, 40, 8, 9, SLOTS_BYTES, WS_SLOTS)
    a("v_lshlrev_b32 v2, 3, v0")
    for k in range(4):
        a(f"ds_read_b64 v[{24+2*k}:{25+2*k}], v2 offset:{PL_STAGE + k*8192}")
    a("s_waitcnt lgkmcnt(0)")
    for k in range(4):
        a(f"v_lshrrev_b32 v{12+k}, 23, v{24+2*k}")
        a(f"v_min_u32 v{12+k}, {NWG-1}, v{12+k}")
        a(f"v_lshlrev_b32 v{16+k}, 5, v{12+k}")
        a(f"ds_read_b32 v{16+k}, v{16+k}")
    a(f"s_mul_i32 s35, s2, {C}")
    a(f"s_lshl_b32 s36, s2, 5")
    a("s_waitcnt lgkmcnt(0)")
    a("s_mov_b64 s[44:45], 0")
    for k in range(4):
        a(f"v_add_u32 v20, {1024*k}, v0")
        a(f"v_sub_u32 v21, v20, v{16+k}")
        a(f"v_mul_u32_u24 v22, {P*SL}, v{12+k}")
        a(f"v_add3_u32 v22, v22, v21, s36")
        a(f"v_lshlrev_b32 v22, 3, v22")
        a(f"v_cmp_gt_u32 vcc, {C}, v20")
        a(f"s_mov_b64 s[46:47], vcc")
        a(f"v_cmp_gt_u32 vcc, {SL}, v21")
        a(f"s_and_b64 exec, vcc, s[46:47]")
        a(f"buffer_store_dwordx2 v[{24+2*k}:{25+2*k}], v22, s[40:43], 0 offen")
        a(f"s_andn2_b64 exec, s[46:47], vcc")
        a.branch(f"s_cbranch_execz PREP_NOVF{k}")
        a(f"v_add_u32 v22, s35, v20")
        a(f"v_lshlrev_b32 v22, 3, v22")
        a(f"buffer_store_dwordx2 v[{24+2*k}:{25+2*k}], v22, s[24:27], 0 offen")
        a.label(f"PREP_NOVF{k}")
        a("s_mov_b64 exec, -1")
    a.branch("s_branch PREP_END")

    a.label("PREP_W")
    a("s_load_dwordx4 s[12:15], s[0:1], 32")
    a("s_load_dwordx4 s[16:19], s[0:1], 48")
    a("s_load_dwordx2 s[20:21], s[0:1], 64")
    a("s_waitcnt lgkmcnt(0)")
    srd(a, 24, 8, 9, 65536)
    srd(a, 28, 12, 13, 8192)
    srd(a, 32, 14, 15, 8192)
    srd(a, 36, 16, 17, 2048)
    srd(a, 40, 18, 19, 8192)
    srd(a, 44, 20, 21, 8192)
    a("v_and_b32 v1, 31, v0")
    a("v_bfe_u32 v2, v0, 5, 1")
    a("v_bfe_u32 v3, v0, 6, 1")
    a("v_bfe_u32 v4, v0, 7, 2")
    a("v_lshlrev_b32 v5, 12, v2")
    a("v_lshl_add_u32 v5, v4, 10, v5")
    a("v_lshl_add_u32 v5, v1, 2, v5")
    a("v_lshl_add_u32 v5, v3, 1, v5")
    a("v_lshlrev_b32 v6, 4, v0")
    a("v_cmp_gt_u32 vcc, 512, v0")
    a("s_and_saveexec_b64 s[48:49], vcc")
    a.branch("s_cbranch_execz PREP_W2")
    mats = ((32, OFF_WB), (44, OFF_WV), (28, OFF_WA), (40, OFF_WU))
    for mi, (sd, off) in enumerate(mats):
        for j in range(8):
            a(f"buffer_load_ushort v{8+8*mi+j}, v5, s[{sd}:{sd+3}], 0 offen offset:{j*128}")
    a("v_mov_b32 v60, 0xbfb8aa3b")
    for mi, (sd, off) in enumerate(mats):
        a(f"s_waitcnt vmcnt({24-8*mi+mi})")
        for j in range(4):
            if FOLD and off == OFF_WB:
                a(f"v_lshlrev_b32 v{8+8*mi+2*j}, 16, v{8+8*mi+2*j}")
                a(f"v_lshlrev_b32 v{9+8*mi+2*j}, 16, v{9+8*mi+2*j}")
                a(f"v_mul_f32 v{8+8*mi+2*j}, v60, v{8+8*mi+2*j}")
                a(f"v_mul_f32 v{9+8*mi+2*j}, v60, v{9+8*mi+2*j}")
                a(f"v_cvt_pk_bf16_f32 v{40+4*mi+j}, v{8+8*mi+2*j}, v{9+8*mi+2*j}")
            else:
                a(f"v_lshl_or_b32 v{40+4*mi+j}, v{9+8*mi+2*j}, 16, v{8+8*mi+2*j}")
        a(f"s_mov_b32 s50, {off}")
        a(f"buffer_store_dwordx4 v[{40+4*mi}:{43+4*mi}], v6, s[24:27], s50 offen")
    a.label("PREP_W2")
    a("s_mov_b64 exec, -1")
    a("v_subrev_u32 v7, 512, v0")
    a("v_cmp_gt_u32 vcc, 128, v7")
    a("s_and_saveexec_b64 s[48:49], vcc")
    a.branch("s_cbranch_execz PREP_END")
    a("v_lshlrev_b32 v5, 10, v2")
    a("v_lshl_add_u32 v5, v1, 2, v5")
    a("v_lshl_add_u32 v5, v3, 1, v5")
    a("v_lshlrev_b32 v6, 4, v7")
    for j in range(8):
        a(f"buffer_load_ushort v{8+j}, v5, s[36:39], 0 offen offset:{j*128}")
    a("s_waitcnt vmcnt(0)")
    a("v_mov_b32 v60, 0xbfb8aa3b")
    for j in range(4):
        if FOLD:
            a(f"v_lshlrev_b32 v{8+2*j}, 16, v{8+2*j}")
            a(f"v_lshlrev_b32 v{9+2*j}, 16, v{9+2*j}")
            a(f"v_mul_f32 v{8+2*j}, v60, v{8+2*j}")
            a(f"v_mul_f32 v{9+2*j}, v60, v{9+2*j}")
            a(f"v_cvt_pk_bf16_f32 v{16+j}, v{8+2*j}, v{9+2*j}")
        else:
            a(f"v_lshl_or_b32 v{16+j}, v{9+2*j}, 16, v{8+2*j}")
    a(f"s_mov_b32 s50, {OFF_WC}")
    a("buffer_store_dwordx4 v[16:19], v6, s[24:27], s50 offen")
    a.label("PREP_END")
    if X2 == "tl":
        a("s_mov_b64 exec, -1")
        a("s_waitcnt vmcnt(0) lgkmcnt(0)")
        a("s_memrealtime s[62:63]")
        a("s_waitcnt lgkmcnt(0)")
        srd(a, 52, 8, 9, 65536, 128 << 20)
        a("v_lshrrev_b32 v1, 6, v0")
        a("s_lshl_b32 s56, s2, 7")
        a("v_lshl_add_u32 v1, v1, 3, s56")
        a("v_mov_b32 v2, s60")
        a("v_mov_b32 v3, s62")
        a("buffer_store_dwordx2 v[2:3], v1, s[52:55], 0 offen")
    a.label("PREP_END2")
    a("s_endpgm")
    return a.text()


NSLOT = QCAP + 128
L_AP = 0
L_REC = 8192
L_DL = L_REC + NSLOT * 8
L_MLO = L_DL + NSLOT * 4
L_MHI = L_MLO + NSLOT * 2
LDSW = L_MHI + NSLOT * 2
assert LDSW % 256 == 0, LDSW
L_DSC = 0
L_LENW = WPW * 1024
L_TJ = L_LENW + 1024
L_WBASE = L_TJ + 256
LDS_TOTAL = L_WBASE + WPW * LDSW
assert LDS_TOTAL <= 163840
INLOOP = [False]


def mfma32(a, d, x, y, c):
    if X2 == "nomfma" and INLOOP[0]:
        return
    a(f"v_mfma_f32_32x32x16_bf16 {vr(d,16)}, {vr(x,4)}, {vr(y,4)}, {c}")


def gen_main():
    a = Asm()
    R = VAlloc(0, 256)
    R.alloc("tid")
    vL = R.alloc("lane")
    vI = R.alloc("i")
    vH = R.alloc("h")
    vH64 = R.alloc("h64")
    vH16 = R.alloc("h16")
    vN4 = R.alloc("n4")
    vSh = R.alloc("sh")
    vRecA = R.alloc("recaddr")
    vDlA = R.alloc("dladdr")
    vMkA = R.alloc("maskaddr")
    vK = R.alloc("K")
    RC = R.alloc("RC", 2, 2)
    vM1 = R.alloc("m10001")
    vB1 = R.alloc("b3f80")
    WB = R.alloc("WB", 32, 4)
    WV = R.alloc("WV", 32, 4)
    WC = R.alloc("WC", 8, 4)
    DEN = R.alloc("DEN", 32, 4)
    NUM = R.alloc("NUM", 32, 4)
    G = R.alloc("G", 16, 4)
    H = R.alloc("H", 16, 4)
    G1 = R.alloc("G1", 16, 4)
    AD = H
    OH = R.alloc("OH", 8, 4)
    GB = R.alloc("GB", 40, 4)
    vMX = R.alloc("maskx")
    vME = R.alloc("maske")
    print("vgprs used:", R.next, file=sys.stderr)

    SX, SEA, SW, SD, SR_, SO, SS = 8, 12, 16, 20, 24, 28, 56
    s_wv, s_G, s_ns, s_T, s_R, s_NS, s_lds, s_tmp, s_Tn, s_mx, s_q, s_lw = 36, 37, 38, 40, 41, 42, 43, 45, 46, 47, 48, 49

    def ps(k):
        if X2 == "pro":
            a(f"s_memtime s[{60+2*k}:{61+2*k}]")
            a("s_waitcnt lgkmcnt(0)")

    a.raw(".globl main_kernel\n.p2align 8\n.type main_kernel,@function\nmain_kernel:")
    a(f"s_cmp_ge_u32 s2, {NWG}")
    a.branch("s_cbranch_scc1 MAIN_END")
    ps(0)
    if X2 == "tl":
        a("s_memrealtime s[60:61]")
    a("s_load_dwordx4 s[4:7], s[0:1], 0")
    a("s_load_dwordx2 s[32:33], s[0:1], 72")
    a("s_load_dwordx2 s[34:35], s[0:1], 88")
    a(f"v_lshrrev_b32 v{vL}, 6, v0")
    a(f"v_readfirstlane_b32 s{s_wv}, v{vL}")
    a(f"v_and_b32 v{vL}, 63, v0")
    a(f"v_and_b32 v{vI}, 31, v0")
    a(f"v_bfe_u32 v{vH}, v0, 5, 1")
    a(f"v_lshlrev_b32 v{vH64}, 6, v{vH}")
    a(f"v_lshlrev_b32 v{vH16}, 4, v{vH}")
    a(f"v_and_b32 v{vSh}, 15, v0")
    a(f"s_lshl_b32 s{s_G}, s2, 3")
    a(f"s_add_u32 s{s_G}, s{s_G}, s{s_wv}")
    a(f"s_mul_i32 s{s_ns}, s{s_G}, {GN}")
    a(f"s_mul_i32 s{s_lds}, s{s_wv}, {LDSW}")
    a(f"s_add_u32 s{s_lds}, s{s_lds}, {L_WBASE}")
    a(f"s_mov_b32 s{s_q}, {QCAP}")
    a(f"s_mov_b32 s{s_lw}, {LDSW}")
    a(f"v_mov_b32 v{vK}, 0xbfb8aa3b")
    a(f"v_mov_b32 v{vM1}, 0x10001")
    a(f"v_mov_b32 v{vB1}, 0x3f80")
    a(f"v_mov_b32 v{vMX}, 0x007fff80")
    a(f"v_mov_b32 v{vME}, 0xffffffe0")
    a(f"v_lshlrev_b32 v{vN4}, 2, v{vI}")
    a(f"v_add_u32 v{vN4}, s{s_lds}, v{vN4}")
    a("s_waitcnt lgkmcnt(0)")
    srd(a, SD, 34, 35, DESC_BYTES, WS_DESC)
    srd(a, SW, 34, 35, OFF_WC + 2048)
    srd(a, SS, 34, 35, SLOTS_BYTES, WS_SLOTS)
    SLT = GB
    vtmp = GB + 32
    vD = G
    WS0 = H
    a(f"s_mul_i32 s{s_tmp}, s2, {P*32}")
    a(f"v_lshl_add_u32 v{vtmp}, v0, 5, s{s_tmp}")
    a(f"v_mov_b32 v{vtmp+3}, {BIG}")
    a(f"v_cmp_gt_u32 vcc, {P}, v0")
    a(f"v_cndmask_b32 v{vtmp}, v{vtmp+3}, v{vtmp}, vcc")
    a(f"buffer_load_dwordx4 {vr(vD,4)}, v{vtmp}, s[{SD}:{SD+3}], 0 offen")
    a(f"buffer_load_dwordx4 {vr(vD+4,4)}, v{vtmp}, s[{SD}:{SD+3}], 0 offen offset:16")
    a(f"v_lshlrev_b32 v{vtmp+2}, 4, v0")
    for k in range(4):
        a(f"s_mov_b32 s{s_tmp}, {k*8192}")
        a(f"buffer_load_dwordx4 {vr(WS0+4*k,4)}, v{vtmp+2}, s[{SW}:{SW+3}], s{s_tmp} offen")

    def slot_addr():
        a(f"v_lshrrev_b32 v{vtmp+2}, 3, v0")
        a(f"v_lshlrev_b32 v{vtmp+2}, 8, v{vtmp+2}")
        a(f"v_and_b32 v{vtmp+3}, 7, v0")
        a(f"v_lshl_add_u32 v{vtmp+2}, v{vtmp+3}, 4, v{vtmp+2}")

    def load_slots():
        slot_addr()
        for k in range(4):
            a(f"s_mul_i32 s{s_tmp}, s2, {P*SL*8}")
            a(f"s_add_u32 s{s_tmp}, s{s_tmp}, {k*16384}")
            a(f"buffer_load_dwordx4 {vr(SLT+4*k,4)}, v{vtmp+2}, s[{SS}:{SS+3}], s{s_tmp} offen")

    srd(a, SX, 4, 5, N * 128)
    srd(a, SEA, 6, 7, E * 32)
    srd(a, SW, 34, 35, 65536)
    srd(a, SR_, 34, 35, RECS_BYTES, WS_RECS)
    srd(a, SO, 32, 33, N * 128)
    for k in range(32):
        a(f"v_mov_b32 v{DEN+k}, 0")
    a("s_waitcnt vmcnt(4)")
    a(f"v_lshlrev_b32 v{vtmp}, 2, v0")
    a(f"v_lshrrev_b32 v{vtmp+4}, 16, v{vD}")
    for j in range(1, 8):
        a(f"v_lshrrev_b32 v{vtmp+5}, 16, v{vD+j}")
        a(f"v_add_u32 v{vtmp+4}, v{vtmp+4}, v{vtmp+5}")
    a(f"v_lshl_or_b32 v{vtmp+4}, v{vD}, 16, v{vtmp+4}")
    a(f"v_cmp_gt_u32 vcc, 256, v0")
    a("s_and_saveexec_b64 s[52:53], vcc")
    a.branch("s_cbranch_execz DSC_SKIP")
    for j in range(WPW):
        a(f"ds_write_b32 v{vtmp}, v{vD+j} offset:{L_DSC + j*1024}")
    a(f"ds_write_b32 v{vtmp}, v{vtmp+4} offset:{L_LENW}")
    a.label("DSC_SKIP")
    a("s_mov_b64 exec, -1")
    a("s_waitcnt vmcnt(0)")
    for k in range(4):
        if k == 3:
            a(f"v_cmp_gt_u32 vcc, 128, v0")
            a("s_and_saveexec_b64 s[52:53], vcc")
            a.branch("s_cbranch_execz WST_SKIP")
        a(f"ds_write_b128 v{vtmp+2}, {vr(WS0+4*k,4)} offset:{L_WBASE + k*LDSW + L_AP if k < 3 else L_WBASE + L_REC}")
    a.label("WST_SKIP")
    a("s_mov_b64 exec, -1")
    a("s_waitcnt lgkmcnt(0)")
    a("s_barrier")
    ps(1)
    load_slots()
    WAt = NUM
    XO = G
    vC = G1
    vS = G1 + 4
    vLw = G1 + 8
    vTot = G1 + 12
    vInc = G1 + 13
    vB = OH
    a(f"s_lshl_b32 s{s_tmp}, s{s_wv}, 10")
    a(f"v_lshl_add_u32 v{vtmp}, v{vL}, 2, s{s_tmp}")
    a(f"v_lshlrev_b32 v{vtmp+1}, 2, v{vL}")
    for k in range(4):
        a(f"ds_read_b32 v{vD+k}, v{vtmp} offset:{L_DSC + k*256}")
    for k in range(4):
        a(f"ds_read_b32 v{vLw+k}, v{vtmp+1} offset:{L_LENW + k*256}")
    a(f"v_lshlrev_b32 v{vtmp+2}, 4, v{vL}")
    for (base, off) in ((WAt, OFF_WA), (WB, OFF_WB), (WV, OFF_WV)):
        for k in range(8):
            a(f"ds_read_b128 {vr(base+4*k,4)}, v{vtmp+2} offset:{L_WBASE + (off//8192)*LDSW + L_AP + k*1024}")
    for c in range(2):
        a(f"ds_read_b128 {vr(WC+4*c,4)}, v{vtmp+2} offset:{L_WBASE + L_REC + c*1024}")
    a("s_waitcnt lgkmcnt(15)")
    for k in range(4):
        a(f"v_lshrrev_b32 v{vC+k}, 16, v{vD+k}")
        a(f"v_and_b32 v{vS+k}, 0xffff, v{vD+k}")
    a(f"v_add_u32 v{vTot}, v{vC}, v{vC+1}")
    a(f"v_add3_u32 v{vTot}, v{vTot}, v{vC+2}, v{vC+3}")
    a(f"v_mov_b32 v{vInc}, v{vTot}")
    wave_scan(a, vInc)
    a(f"v_readlane_b32 s{s_T}, v{vInc}, 63")
    a(f"v_sub_u32 v{vB}, v{vInc}, v{vTot}")
    a(f"v_add_u32 v{vB+1}, v{vB}, v{vC}")
    a(f"v_add_u32 v{vB+2}, v{vB+1}, v{vC+1}")
    a(f"v_add_u32 v{vB+3}, v{vB+2}, v{vC+2}")
    for k in range(4):
        a(f"v_lshrrev_b32 v{vLw+k}, 16, v{vLw+k}")
        a(f"v_sub_u32 v{vB+k}, v{vB+k}, v{vS+k}")
        a(f"v_add_u32 v{vB+k}, v{vB+k}, v{vLw+k}")
        a(f"ds_write_b32 v{vtmp}, v{vB+k} offset:{L_DSC + k*256}")
    a(f"v_mov_b32 v{vTot}, s{s_T}")
    a(f"s_lshl_b32 s{s_tmp}, s{s_wv}, 2")
    a(f"v_mov_b32 v{vInc}, s{s_tmp}")
    a(f"ds_write_b32 v{vInc}, v{vTot} offset:{L_TJ}")
    a("s_waitcnt lgkmcnt(0)")
    a("s_barrier")
    ps(2)
    a(f"v_mov_b32 v{vInc}, 0")
    a(f"ds_read_b128 {vr(G1,4)}, v{vInc} offset:{L_TJ}")
    a(f"ds_read_b128 {vr(G1+4,4)}, v{vInc} offset:{L_TJ+16}")
    a("s_waitcnt lgkmcnt(0)")
    a(f"v_max3_u32 v{G1}, v{G1}, v{G1+1}, v{G1+2}")
    a(f"v_max3_u32 v{G1}, v{G1}, v{G1+3}, v{G1+4}")
    a(f"v_max3_u32 v{G1}, v{G1}, v{G1+5}, v{G1+6}")
    a(f"v_max_u32 v{G1}, v{G1}, v{G1+7}")
    a(f"v_readfirstlane_b32 s{s_mx}, v{G1}")
    a(f"s_mov_b32 s{s_R}, 0")

    a.label("ROUND")
    a(f"s_sub_u32 s{s_Tn}, s{s_T}, s{s_R}")
    a(f"s_cselect_b32 s{s_Tn}, 0, s{s_Tn}")
    a(f"s_min_u32 s{s_Tn}, s{s_Tn}, {QCAP}")
    vt = H
    vi, vad, vval, vdum = vt, vt + 1, vt + 2, vt + 4
    a(f"v_mov_b32 v{vdum}, 0x007fff80")
    a(f"v_mov_b32 v{vdum+1}, {BIG}")
    a(f"v_add_u32 v{vi}, s{s_Tn}, v{vL}")
    a(f"v_lshl_add_u32 v{vad}, v{vi}, 3, s{s_lds}")
    a(f"ds_write_b64 v{vad}, {vr(vdum,2)} offset:{L_REC}")
    a(f"ds_write_b64 v{vad}, {vr(vdum,2)} offset:{L_REC+512}")
    a(f"v_lshl_add_u32 v{vad}, v{vi}, 2, s{s_lds}")
    a(f"v_mov_b32 v{vval}, {31*256}")
    a(f"ds_write_b32 v{vad}, v{vval} offset:{L_DL}")
    a(f"ds_write_b32 v{vad}, v{vval} offset:{L_DL+256}")
    a(f"v_lshl_add_u32 v{vad}, v{vi}, 1, s{s_lds}")
    a(f"v_mov_b32 v{vval}, 0")
    a(f"ds_write_b16 v{vad}, v{vval} offset:{L_MLO}")
    a(f"ds_write_b16 v{vad}, v{vval} offset:{L_MLO+128}")
    a(f"ds_write_b16 v{vad}, v{vval} offset:{L_MHI}")
    a(f"ds_write_b16 v{vad}, v{vval} offset:{L_MHI+128}")
    vT4 = vt + 6
    vS0 = vt + 7
    vSR0 = vt + 8
    vLen = G1
    vDl = OH
    vj, vpos, vwb, va = vt + 9, vt + 10, vt + 11, vt + 15
    vLDSW = vt + 3
    vS1 = RC
    vSR1 = RC + 1
    a(f"v_lshrrev_b32 v{vT4}, 3, v0")
    a(f"v_lshlrev_b32 v{vT4}, 2, v{vT4}")
    a(f"v_and_b32 v{vS0}, 7, v0")
    a(f"v_lshlrev_b32 v{vS0}, 1, v{vS0}")
    for k in range(4):
        a(f"ds_read_b32 v{vLen+k}, v{vT4} offset:{L_LENW + k*256}")
    a(f"v_mov_b32 v{vLDSW}, {LDSW}")
    slot_addr()
    a(f"v_mov_b32 v{vtmp+3}, {BIG}")
    a(f"v_add_u32 v{vS1}, 16, v{vS0}")
    a("s_waitcnt lgkmcnt(0)")
    for k in range(4):
        a(f"v_and_b32 v{vLen+k}, 0xffff, v{vLen+k}")
    for k in range(4):
        a(f"v_cmp_lt_u32 vcc, v{vS1}, v{vLen+k}")
        a(f"v_cndmask_b32 v{vtmp+4+k}, v{vtmp+3}, v{vtmp+2}, vcc")
        a(f"s_mul_i32 s{s_tmp}, s2, {P*SL*8}")
        a(f"s_add_u32 s{s_tmp}, s{s_tmp}, {k*16384 + 128}")
        a(f"buffer_load_dwordx4 {vr(SLT+16+4*k,4)}, v{vtmp+4+k}, s[{SS}:{SS+3}], s{s_tmp} offen")
    a(f"s_cmp_lg_u32 s{s_R}, 0")
    a.branch("s_cbranch_scc1 XO_SKIP")
    a(f"v_add_u32 v{vtmp+1}, s{s_ns}, v{vI}")
    a(f"v_lshl_add_u32 v{vtmp+1}, v{vtmp+1}, 7, v{vH64}")
    for s in range(4):
        a(f"buffer_load_dwordx4 {vr(XO+4*s,4)}, v{vtmp+1}, s[{SX}:{SX+3}], 0 offen offset:{16*s}")
    a.label("XO_SKIP")

    def scatter(w0, w1, vdelta, vsr, valid_cmp):
        a(f"v_add_u32 v{vpos}, v{vdelta}, v{vsr}")
        a(f"v_and_b32 v{vj}, 7, v{w1}")
        a(f"v_mul_u32_u24 v{vwb}, v{vj}, v{vLDSW}")
        valid_cmp()
        a(f"v_cmp_gt_u32 s[52:53], s{s_q}, v{vpos}")
        a(f"v_lshl_add_u32 v{va}, v{vpos}, 3, v{vwb}")
        a(f"s_and_b64 exec, vcc, s[52:53]")
        a(f"ds_write_b64 v{va}, v[{w0}:{w1}] offset:{L_WBASE + L_REC}")
        a("s_mov_b64 exec, -1")

    for lvl in range(2):
        a(f"s_waitcnt vmcnt({8 if lvl == 0 else 4})")
        if lvl == 1:
            a(f"s_cmp_eq_u32 s{s_R}, 0")
            a.branch("s_cbranch_scc1 L2_OK")
            a("s_waitcnt vmcnt(0)")
            a.label("L2_OK")
        if lvl == 0:
            ps(3)
        a(f"v_add_u32 v{vS1}, 1, v{vS0}")
        a(f"v_subrev_u32 v{vSR0}, s{s_R}, v{vS0}")
        a(f"v_add_u32 v{vSR1}, 1, v{vSR0}")
        for k in range(4):
            for e in range(2):
                w1 = SLT + 16 * lvl + 4 * k + 2 * e + 1
                a(f"v_and_b32 v{vj}, 7, v{w1}")
                a(f"v_lshl_add_u32 v{va}, v{vj}, 10, v{vT4}")
                a(f"ds_read_b32 v{vDl+2*k+e}, v{va} offset:{L_DSC + k*256}")
        a("s_waitcnt lgkmcnt(0)")
        for k in range(4):
            for e in range(2):
                w0 = SLT + 16 * lvl + 4 * k + 2 * e
                scatter(w0, w0 + 1, vDl + 2 * k + e, vSR0 if e == 0 else vSR1,
                        lambda k=k, e=e: a(f"v_cmp_lt_u32 vcc, v{vS0 if e == 0 else vS1}, v{vLen+k}"))
        if lvl == 0:
            a(f"v_add_u32 v{vS0}, 16, v{vS0}")
    vo_len, vo_s, vo_base = G1, G1 + 1, G1 + 2
    vo_rec = G1 + 4
    vo_d, vo_sr = G1 + 6, G1 + 7
    a(f"v_lshlrev_b32 v{vad}, 2, v0")
    a(f"v_and_b32 v{vad}, 0x3ff, v{vad}")
    a(f"ds_read_b32 v{vo_len}, v{vad} offset:{L_LENW}")
    a("s_waitcnt lgkmcnt(0)")
    a(f"v_lshrrev_b32 v{vo_base}, 16, v{vo_len}")
    a(f"v_and_b32 v{vo_len}, 0xffff, v{vo_len}")
    a(f"v_cmp_gt_u32 vcc, 256, v0")
    a(f"v_cndmask_b32 v{vo_len}, 0, v{vo_len}, vcc")
    a(f"v_mul_u32_u24 v{vo_s}, {C}, v0")
    a(f"v_add_u32 v{vo_base}, v{vo_base}, v{vo_s}")
    a(f"v_mov_b32 v{vo_s}, {SL}")
    a.label("OVF")
    a(f"v_cmp_lt_u32 vcc, v{vo_s}, v{vo_len}")
    a("s_nop 1")
    a("s_cbranch_vccz OVF_DONE")
    a(f"v_add_u32 v{vo_d}, v{vo_base}, v{vo_s}")
    a(f"v_lshlrev_b32 v{vo_d}, 3, v{vo_d}")
    a(f"v_mov_b32 v{vo_sr}, {BIG}")
    a(f"v_cndmask_b32 v{vo_d}, v{vo_sr}, v{vo_d}, vcc")
    a(f"buffer_load_dwordx2 {vr(vo_rec,2)}, v{vo_d}, s[{SR_}:{SR_+3}], 0 offen")
    a("s_waitcnt vmcnt(0)")
    a(f"v_and_b32 v{vj}, 7, v{vo_rec+1}")
    a(f"v_lshl_add_u32 v{va}, v{vj}, 10, v{vad}")
    a(f"ds_read_b32 v{vo_d}, v{va} offset:{L_DSC}")
    a(f"v_subrev_u32 v{vo_sr}, s{s_R}, v{vo_s}")
    a("s_waitcnt lgkmcnt(0)")
    scatter(vo_rec, vo_rec + 1, vo_d, vo_sr, lambda: a(f"v_cmp_lt_u32 vcc, v{vo_s}, v{vo_len}"))
    a(f"v_add_u32 v{vo_s}, 1, v{vo_s}")
    a.branch("s_branch OVF")
    a.label("OVF_DONE")
    ps(4)
    a(f"s_cmp_lg_u32 s{s_R}, 0")
    a.branch("s_cbranch_scc1 AP_DONE")
    a("s_waitcnt vmcnt(0)")
    a(f"v_lshl_add_u32 v{RC}, v{vH}, 10, v{vN4}")
    for c in range(2):
        d = H if c == 0 else G1
        for s in range(4):
            mfma32(a, d, XO + 4 * s, WAt + 4 * (2 * s + c), "0" if s == 0 else vr(d, 16))
    for c in range(2):
        d = H if c == 0 else G1
        for r in range(16):
            row = 8 * (r >> 2) + (r & 3)
            if FOLD:
                a(f"v_mul_f32 v{d+r}, v{vK}, v{d+r}")
            a(f"ds_write_b32 v{RC}, v{d+r} offset:{L_AP + row*256 + c*128}")
    for k in range(32):
        a(f"v_mov_b32 v{NUM+k}, 0")
    a.label("AP_DONE")
    a("s_waitcnt lgkmcnt(0)")
    a("s_barrier")
    ps(5)
    NM = QCAP // 64
    a(f"v_lshl_add_u32 v{RC}, v{vL}, 3, s{s_lds}")
    for m in range(NM):
        a(f"ds_read_b32 v{G+m}, v{RC} offset:{L_REC + m*512}")
    a(f"v_lshl_add_u32 v{G1}, v{vL}, 2, s{s_lds}")
    a(f"v_lshl_add_u32 v{G1+1}, v{vL}, 1, s{s_lds}")
    a("s_waitcnt lgkmcnt(0)")
    for m in range(NM):
        a(f"v_add_u32 v{G1+2}, {64*m}, v{vL}")
        a(f"v_cmp_gt_u32 vcc, s{s_Tn}, v{G1+2}")
        a(f"s_and_b64 exec, exec, vcc")
        a.branch(f"s_cbranch_execz DRV_DONE")
        a(f"v_and_b32 v{G+m}, 31, v{G+m}")
        a(f"v_lshlrev_b32 v{G1+3}, v{G+m}, 1")
        a(f"v_lshrrev_b32 v{G1+4}, 16, v{G1+3}")
        a(f"v_lshlrev_b32 v{G+m}, 8, v{G+m}")
        a(f"ds_write_b32 v{G1}, v{G+m} offset:{L_DL + m*256}")
        a(f"ds_write_b16 v{G1+1}, v{G1+3} offset:{L_MLO + m*128}")
        a(f"ds_write_b16 v{G1+1}, v{G1+4} offset:{L_MHI + m*128}")
    a.label("DRV_DONE")
    a("s_mov_b64 exec, -1")
    ps(6)
    a(f"s_add_u32 s{s_NS}, s{s_Tn}, 31")
    a(f"s_lshr_b32 s{s_NS}, s{s_NS}, 5")
    a(f"s_cmp_eq_u32 s{s_NS}, 0")
    a.branch("s_cbranch_scc1 LOOP_DONE")
    a(f"v_lshl_add_u32 v{vRecA}, v{vI}, 3, s{s_lds}")
    a(f"v_lshl_add_u32 v{vDlA}, v{vH}, 4, s{s_lds}")
    a(f"v_bfe_u32 v{RC}, v{vI}, 4, 1")
    a(f"v_mul_u32_u24 v{RC}, {L_MHI-L_MLO}, v{RC}")
    a(f"v_lshl_add_u32 v{vMkA}, v{vH}, 3, s{s_lds}")
    a(f"v_add_u32 v{vMkA}, v{vMkA}, v{RC}")
    if EXP == "noloop":
        a.branch("s_branch EPILOGUE")
    if EXP in ("nogather", "noea"):
        a(f"s_mov_b32 s{SEA+2}, 0")
    if EXP in ("nogather", "nox"):
        a(f"s_mov_b32 s{SX+2}, 0")

    def gathers(b):
        base = GB + 20 * b
        a(f"v_and_or_b32 v{RC}, v{RC}, v{vMX}, v{vH64}")
        a(f"v_and_or_b32 v{RC+1}, v{RC+1}, v{vME}, v{vH16}")
        for s in range(4):
            a(f"buffer_load_dwordx4 {vr(base+4*s,4)}, v{RC}, s[{SX}:{SX+3}], 0 offen offset:{16*s}")
        a(f"buffer_load_dwordx4 {vr(base+16,4)}, v{RC+1}, s[{SEA}:{SEA+3}], 0 offen")

    a(f"ds_read_b64 {vr(RC,2)}, v{vRecA} offset:{L_REC}")
    a("s_waitcnt lgkmcnt(0)")
    gathers(0)

    def merge(valu, mf, first_gap=0):
        n, m = len(valu), len(mf)
        pos = [first_gap + (k * (n - first_gap)) // max(m, 1) for k in range(m)]
        k = 0
        for idx, ins in enumerate(valu):
            while k < m and pos[k] <= idx:
                mf[k]()
                k += 1
            a(ins)
        while k < m:
            mf[k]()
            k += 1

    def valu_g(g):
        L = []
        for r in range(16):
            if not FOLD:
                L.append(f"v_mul_f32 v{g+r}, v{vK}, v{g+r}")
        for r in range(16):
            L.append(f"v_exp_f32 v{g+r}, v{g+r}")
        for r in range(16):
            L.append(f"v_add_f32 v{g+r}, 1.0, v{g+r}")
        for r in range(16):
            L.append(f"v_rcp_f32 v{g+r}, v{g+r}")
        return L

    def pc(g):
        for r in range(16):
            a(f"v_mul_f32 v{H+r}, v{H+r}, v{g+r}")
        for j in range(8):
            a(f"v_cvt_pk_bf16_f32 v{g+j}, v{g+2*j}, v{g+2*j+1}")
        for j in range(8):
            a(f"v_cvt_pk_bf16_f32 v{H+j}, v{H+2*j}, v{H+2*j+1}")

    def gchain(b, c, g):
        base = GB + 20 * b
        L = [(lambda s=s: mfma32(a, g, base + 4 * s, WB + 4 * (2 * s + c), vr(g, 16))) for s in range(4)]
        L.append(lambda: mfma32(a, g, base + 16, WC + 4 * c, vr(g, 16)))
        return L

    def hchain(b, c):
        base = GB + 20 * b
        return [(lambda s=s: mfma32(a, H, base + 4 * s, WV + 4 * (2 * s + c), "0" if s == 0 else vr(H, 16))) for s in range(4)]

    def rchain(c, g):
        L = []
        for s in range(2):
            L.append(lambda s=s: mfma32(a, DEN + 16 * c, OH + 4 * s, g + 4 * s, vr(DEN + 16 * c, 16)))
            L.append(lambda s=s: mfma32(a, NUM + 16 * c, OH + 4 * s, H + 4 * s, vr(NUM + 16 * c, 16)))
        return L

    def step(b):
        a(f"ds_read_b64 {vr(RC,2)}, v{vRecA} offset:{L_REC + 256}")
        for q in range(4):
            a(f"ds_read_b128 {vr(AD+4*q,4)}, v{vDlA} offset:{L_DL + q*32}")
        for q in range(4):
            a(f"ds_read_b64 {vr(OH+2*q,2)}, v{vMkA} offset:{L_MLO + q*16}")
        a("s_waitcnt lgkmcnt(8)")
        gathers(1 - b)
        a("s_waitcnt lgkmcnt(4)")
        for k in range(16):
            a(f"v_add_u32 v{AD+k}, v{AD+k}, v{vN4}")
        for r in range(16):
            a(f"ds_read_b32 v{G+r}, v{AD+r} offset:{L_AP}")
        for r in range(16):
            a(f"ds_read_b32 v{G1+r}, v{AD+r} offset:{L_AP + 128}")
        a("s_waitcnt vmcnt(5) lgkmcnt(15)")
        ohl = []
        for k in range(8):
            ohl.append(f"v_lshrrev_b32 v{OH+k}, v{vSh}, v{OH+k}")
        for k in range(8):
            ohl.append(f"v_and_b32 v{OH+k}, v{vM1}, v{OH+k}")
        for k in range(8):
            ohl.append(f"v_mul_u32_u24 v{OH+k}, v{vB1}, v{OH+k}")
        ohl.append(f"v_add_u32 v{vRecA}, 256, v{vRecA}")
        ohl.append(f"v_add_u32 v{vDlA}, 128, v{vDlA}")
        ohl.append(f"v_add_u32 v{vMkA}, 64, v{vMkA}")
        merge(ohl, gchain(b, 0, G))
        a("s_waitcnt lgkmcnt(0)")
        merge(valu_g(G), hchain(b, 0) + gchain(b, 1, G1))
        pc(G)
        merge(valu_g(G1), rchain(0, G) + hchain(b, 1))
        pc(G1)
        for f in rchain(1, G1):
            f()

    a.label("LOOP")
    INLOOP[0] = True
    for b in range(2):
        step(b)
        a(f"s_sub_u32 s{s_NS}, s{s_NS}, 1")
        a(f"s_cmp_eq_u32 s{s_NS}, 0")
        if b < 1:
            a.branch("s_cbranch_scc1 LOOP_DONE")
        else:
            a.branch("s_cbranch_scc0 LOOP")
    a.label("LOOP_DONE")
    INLOOP[0] = False
    a("s_waitcnt vmcnt(0) lgkmcnt(0)")
    a(f"s_add_u32 s{s_R}, s{s_R}, {QCAP}")
    a(f"s_cmp_ge_u32 s{s_R}, s{s_mx}")
    a.branch("s_cbranch_scc1 EPILOGUE")
    a("s_barrier")
    load_slots()
    a("s_waitcnt vmcnt(0)")
    a.branch("s_branch ROUND")

    a.label("EPILOGUE")
    a("s_waitcnt vmcnt(0) lgkmcnt(0)")
    if EXP in ("nogather", "nox"):
        a(f"s_mov_b32 s{SX+2}, {N*128}")
    WUt = WB
    XD = WV
    VO = WV + 16
    XO = GB
    a(f"v_lshlrev_b32 v{vtmp+2}, 4, v{vL}")
    for k in range(8):
        if k % 4 == 0:
            a(f"s_mov_b32 s{s_tmp}, {OFF_WU + k*1024}")
        a(f"buffer_load_dwordx4 {vr(WUt+4*k,4)}, v{vtmp+2}, s[{SW}:{SW+3}], s{s_tmp} offen offset:{(k%4)*1024}")
    a(f"v_add_u32 v{vtmp+1}, s{s_ns}, v{vI}")
    a(f"v_lshl_add_u32 v{vtmp+1}, v{vtmp+1}, 7, v{vH64}")
    for s in range(4):
        a(f"buffer_load_dwordx4 {vr(XO+4*s,4)}, v{vtmp+1}, s[{SX}:{SX+3}], 0 offen offset:{16*s}")
    a(f"v_lshl_add_u32 v{vtmp}, v{vH}, 2, s{s_ns}")
    a(f"v_lshlrev_b32 v{vtmp}, 7, v{vtmp}")
    a(f"v_lshl_add_u32 v{vtmp}, v{vI}, 2, v{vtmp}")
    for r in range(16):
        row = 8 * (r >> 2) + (r & 3)
        a(f"buffer_load_dword v{XD+r}, v{vtmp}, s[{SX}:{SX+3}], 0 offen offset:{row*128}")
    a(f"v_mov_b32 v{vtmp+3}, {BIG}")
    a(f"v_lshlrev_b32 v{vtmp+1}, 2, v{vH}")
    for r in range(16):
        row = 8 * (r >> 2) + (r & 3)
        a(f"v_cmp_gt_u32 vcc, {GN-row if GN-row>0 else 0}, v{vtmp+1}")
        a(f"v_add_u32 v{VO+r}, {row*128}, v{vtmp}")
        a(f"v_cndmask_b32 v{VO+r}, v{vtmp+3}, v{VO+r}, vcc")
    a(f"v_mov_b32 v{vtmp+3}, 0x358637bd")
    for k in range(32):
        a(f"v_add_f32 v{DEN+k}, v{vtmp+3}, v{DEN+k}")
    for k in range(32):
        a(f"v_rcp_f32 v{DEN+k}, v{DEN+k}")
    a("s_waitcnt vmcnt(16)")
    for c in range(2):
        d = G if c == 0 else H
        for s in range(4):
            mfma32(a, d, XO + 4 * s, WUt + 4 * (2 * s + c), "0" if s == 0 else vr(d, 16))
    for c in range(2):
        d = G if c == 0 else H
        for r in range(16):
            a(f"v_fma_f32 v{d+r}, v{NUM+16*c+r}, v{DEN+16*c+r}, v{d+r}")
        for r in range(16):
            a(f"v_max_f32 v{d+r}, 0, v{d+r}")
    a("s_waitcnt vmcnt(0)")
    for r in range(16):
        a(f"v_lshlrev_b32 v{G1}, 16, v{XD+r}")
        a(f"v_and_b32 v{G1+1}, 0xffff0000, v{XD+r}")
        a(f"v_add_f32 v{G1}, v{G1}, v{G+r}")
        a(f"v_add_f32 v{G1+1}, v{G1+1}, v{H+r}")
        a(f"v_cvt_pk_bf16_f32 v{XD+r}, v{G1}, v{G1+1}")
        a(f"buffer_store_dword v{XD+r}, v{VO+r}, s[{SO}:{SO+3}], 0 offen")
    if X2 == "tl":
        a("s_waitcnt vmcnt(0) lgkmcnt(0)")
        a("s_memrealtime s[62:63]")
        a("s_waitcnt lgkmcnt(0)")
        srd(a, 52, 34, 35, 65536, (128 << 20) + 65536)
        a(f"s_lshl_b32 s{s_tmp}, s{s_G}, 3")
        a(f"v_mov_b32 v1, s{s_tmp}")
        a("v_mov_b32 v2, s60")
        a("v_mov_b32 v3, s62")
        a("buffer_store_dwordx2 v[2:3], v1, s[52:55], 0 offen")
    if X2 == "pro":
        a(f"s_lshr_b32 s84, s{s_G}, 3")
        a(f"s_cmp_lg_u32 s84, 37")
        a.branch("s_cbranch_scc1 MAIN_END")
        a("s_load_dwordx2 s[80:81], s[0:1], 80")
        a("s_waitcnt lgkmcnt(0)")
        a("s_mov_b32 s82, 256")
        a("s_mov_b32 s83, 0x00020000")
        a(f"s_lshl_b32 s85, s{s_wv}, 5")
        for k in range(6):
            a(f"s_sub_u32 s84, s{62+2*k}, s60")
            a(f"v_mov_b32 v{RC}, s84")
            a(f"v_mov_b32 v{RC+1}, {4*k}")
            a(f"buffer_store_dword v{RC}, v{RC+1}, s[80:83], s85 offen")
        a("s_waitcnt vmcnt(0)")
    a.label("MAIN_END")
    a("s_endpgm")
    return a.text()


def kd(name, vgpr, sgpr):
    acc = (vgpr + 3) // 4 * 4
    return f""".amdhsa_kernel {name}
  .amdhsa_next_free_vgpr {vgpr}
  .amdhsa_next_free_sgpr {sgpr}
  .amdhsa_accum_offset {acc}
  .amdhsa_group_segment_fixed_size 0
  .amdhsa_kernarg_size 96
  .amdhsa_user_sgpr_count 2
  .amdhsa_user_sgpr_kernarg_segment_ptr 1
  .amdhsa_system_sgpr_workgroup_id_x 1
.end_amdhsa_kernel
"""


def main():
    out = HEADER
    out += f"; @launch kernel=prep_kernel grid=({P+1},1,1) block=(1024,1,1) lds={PREP_LDS}\n"
    out += f"; @launch kernel=main_kernel grid=({NWG},1,1) block=({64*WPW},1,1) lds={LDS_TOTAL}\n"
    out += '.amdgcn_target "amdgcn-amd-amdhsa--gfx950"\n.text\n'
    out += gen_prep()
    out += gen_main()
    out += '.section .rodata,"a"\n.p2align 6\n'
    out += kd("prep_kernel", 64, 64)
    out += ".p2align 6\n"
    out += kd("main_kernel", 256, 96)
    path = sys.argv[1] if len(sys.argv) > 1 else "gather_scatter__edge_featured_mpnn_gatedgcn__graph.s"
    open(path, "w").write(out)


if __name__ == "__main__":
    main()
```

```python
import sys, os
from emit import Asm, VAlloc, vr, sr

N = 50000
E = 800000
P = 250
C = 3200
NG = 2000
GN = 25
WPW = 8
NWG = NG // WPW
QCAP = 512

OFF_WB, OFF_WV, OFF_WA, OFF_WC, OFF_WU = 0, 8192, 16384, 24576, 32768
WS_DESC = 65536
DESC_BYTES = P * NG * 4
WS_RECS = 4194304
RECS_BYTES = E * 8
SL = 32
WS_SLOTS = 16 << 20
SLOTS_BYTES = NWG * P * SL * 8
MAGIC25 = 171798692
BIG = 0x40000000
EXP = os.environ.get("EXP", "")
FOLD = os.environ.get("FOLD", "1") == "1"
X2 = os.environ.get("X2", "")

HEADER = open("gather_scatter__edge_featured_mpnn_gatedgcn__graph.s.ref").read().split("; @launch")[0]


def srd(a, d, lo, hi, nbytes, add=0):
    if add:
        a(f"s_add_u32 s{d}, s{lo}, {add}")
        a(f"s_addc_u32 s{d+1}, s{hi}, 0")
    else:
        a(f"s_mov_b32 s{d}, s{lo}")
        a(f"s_mov_b32 s{d+1}, s{hi}")
    a(f"s_and_b32 s{d+1}, s{d+1}, 0xffff")
    a(f"s_mov_b32 s{d+2}, {nbytes}")
    a(f"s_mov_b32 s{d+3}, 0x00020000")


def wave_scan(a, v):
    for sh in (1, 2, 4, 8):
        a(f"v_add_u32_dpp v{v}, v{v}, v{v} row_shr:{sh} row_mask:0xf bank_mask:0xf bound_ctrl:0")
    a(f"v_add_u32_dpp v{v}, v{v}, v{v} row_bcast:15 row_mask:0xa bank_mask:0xf")
    a(f"v_add_u32_dpp v{v}, v{v}, v{v} row_bcast:31 row_mask:0xc bank_mask:0xf")


PL_STAGE = NG * 4 + 64
PREP_LDS = PL_STAGE + 4096 * 8


def gen_prep():
    a = Asm()
    a.raw(".globl prep_kernel\n.p2align 8\n.type prep_kernel,@function\nprep_kernel:")
    a(f"s_cmp_gt_u32 s2, {P}")
    a.branch("s_cbranch_scc1 PREP_END2")
    if X2 == "tl":
        a("s_memrealtime s[60:61]")
    a("s_load_dwordx4 s[4:7], s[0:1], 16")
    a("s_load_dwordx2 s[8:9], s[0:1], 88")
    a(f"s_cmp_eq_u32 s2, {P}")
    a.branch("s_cbranch_scc1 PREP_W")
    a("s_waitcnt lgkmcnt(0)")
    srd(a, 12, 6, 7, E * 4)
    srd(a, 16, 4, 5, E * 4)
    srd(a, 20, 8, 9, DESC_BYTES, WS_DESC)
    srd(a, 24, 8, 9, RECS_BYTES, WS_RECS)
    a(f"s_mul_i32 s3, s2, {C*4}")
    a("v_lshl_add_u32 v1, v0, 4, s3")
    a(f"v_cmp_gt_u32 vcc, {C//4}, v0")
    a("s_mov_b64 s[30:31], vcc")
    a(f"v_cmp_gt_u32 vcc, {NG//4}, v0")
    a("s_mov_b64 s[32:33], vcc")
    for k in range(4):
        a(f"v_mov_b32 v{40+k}, 0")
    a("v_lshlrev_b32 v2, 4, v0")
    a("s_mov_b64 exec, s[30:31]")
    a.branch("s_cbranch_execz PREP_A")
    a("buffer_load_dwordx4 v[4:7], v1, s[12:15], 0 offen")
    a("buffer_load_dwordx4 v[8:11], v1, s[16:19], 0 offen")
    a.label("PREP_A")
    PF = os.environ.get("PF", "")
    if PF:
        a("s_mov_b64 exec, -1")
        a("s_load_dwordx4 s[44:47], s[0:1], 0")
        a("s_waitcnt lgkmcnt(0)")
        srd(a, 48, 46, 47, E * 32)
        srd(a, 52, 44, 45, N * 128)
        a(f"s_mul_i32 s56, s2, {C*32}")
        a("v_lshl_add_u32 v33, v0, 4, s56")
        if "e" in PF:
            for k in range(7):
                a(f"s_mov_b32 s57, {k*16384}")
                a(f"buffer_load_dwordx4 v[36:39], v33, s[48:51], s57 offen")
        if "x" in PF:
            a(f"s_mul_i32 s56, s2, {N*128//P}")
            a("v_lshl_add_u32 v33, v0, 4, s56")
            for k in range(2):
                a(f"s_mov_b32 s57, {k*16384}")
                a(f"buffer_load_dwordx4 v[36:39], v33, s[52:55], s57 offen")
    a("s_mov_b64 exec, s[32:33]")
    a.branch("s_cbranch_execz PREP_A2")
    a("ds_write_b128 v2, v[40:43]")
    a.label("PREP_A2")
    a("s_mov_b64 exec, -1")
    a("s_waitcnt lgkmcnt(0)")
    a("s_barrier")
    a("s_mov_b64 exec, s[30:31]")
    a.branch("s_cbranch_execz PREP_B")
    a(f"s_mov_b32 s34, {MAGIC25}")
    a("v_mov_b32 v3, 1")
    a(f"s_waitcnt vmcnt({(7 if 'e' in PF else 0) + (2 if 'x' in PF else 0)})")
    for i in range(4):
        a(f"v_mul_hi_u32 v{12+i}, v{4+i}, s34")
    for i in range(4):
        a(f"v_mul_u32_u24 v{16+i}, {GN}, v{12+i}")
    for i in range(4):
        a(f"v_sub_u32 v{16+i}, v{4+i}, v{16+i}")
    for i in range(4):
        a(f"v_lshlrev_b32 v{12+i}, 2, v{12+i}")
    for i in range(4):
        a(f"ds_add_rtn_u32 v{20+i}, v{12+i}, v3")
    a(f"s_mul_i32 s35, s2, {C}")
    a("v_lshl_add_u32 v32, v0, 2, s35")
    for i in range(4):
        a(f"v_lshl_or_b32 v{24+2*i}, v{8+i}, 7, v{16+i}")
        a(f"v_lshrrev_b32 v33, 5, v{12+i}")
        a(f"v_lshl_or_b32 v{24+2*i}, v33, 23, v{24+2*i}")
        a(f"v_add_u32 v{25+2*i}, {i}, v32")
        a(f"v_bfe_u32 v33, v{12+i}, 2, 3")
        a(f"v_lshl_or_b32 v{25+2*i}, v{25+2*i}, 5, v33")
    a("s_waitcnt lgkmcnt(0)")
    a.label("PREP_B")
    a("s_mov_b64 exec, -1")
    a("s_barrier")
    a("s_mov_b64 exec, s[32:33]")
    a.branch("s_cbranch_execz PREP_C")
    a("ds_read_b128 v[40:43], v2")
    a("s_waitcnt lgkmcnt(0)")
    a.label("PREP_C")
    a("s_mov_b64 exec, -1")
    a("v_add_u32 v44, v40, v41")
    a("v_add_u32 v45, v44, v42")
    a("v_add_u32 v46, v45, v43")
    a("v_mov_b32 v47, v46")
    wave_scan(a, 47)
    a("v_lshrrev_b32 v48, 6, v0")
    a("v_and_b32 v49, 63, v0")
    a("v_readfirstlane_b32 s36, v48")
    a("v_lshlrev_b32 v50, 2, v48")
    a(f"v_add_u32 v50, {NG*4}, v50")
    a("v_cmp_eq_u32 vcc, 63, v49")
    a("s_and_saveexec_b64 s[38:39], vcc")
    a("ds_write_b32 v50, v47")
    a("s_mov_b64 exec, -1")
    a("s_waitcnt lgkmcnt(0)")
    a("s_barrier")
    a("v_and_b32 v51, 15, v49")
    a("v_lshlrev_b32 v50, 2, v51")
    a(f"v_add_u32 v50, {NG*4}, v50")
    a("ds_read_b32 v52, v50")
    a("v_cmp_gt_u32 vcc, s36, v51")
    a("s_waitcnt lgkmcnt(0)")
    a("v_cndmask_b32 v52, 0, v52, vcc")
    for sh in (1, 2, 4, 8):
        a(f"v_add_u32_dpp v52, v52, v52 row_shr:{sh} row_mask:0xf bank_mask:0xf bound_ctrl:0")
    a("v_readlane_b32 s37, v52, 15")
    a("v_sub_u32 v47, v47, v46")
    a("v_add_u32 v47, s37, v47")
    a("v_mov_b32 v56, v47")
    a("v_add_u32 v57, v47, v40")
    a("v_add_u32 v58, v47, v44")
    a("v_add_u32 v59, v47, v45")
    for i in range(4):
        a(f"v_lshl_or_b32 v{60+i}, v{40+i}, 16, v{56+i}")
    a("v_lshrrev_b32 v53, 1, v0")
    a(f"v_mul_u32_u24 v53, {P*32}, v53")
    a("v_and_b32 v54, 1, v0")
    a("v_lshl_add_u32 v53, v54, 4, v53")
    a("s_lshl_b32 s3, s2, 5")
    a("v_add_u32 v53, s3, v53")
    a("s_mov_b64 exec, s[32:33]")
    a.branch("s_cbranch_execz PREP_D")
    a("ds_write_b128 v2, v[56:59]")
    a("buffer_store_dwordx4 v[60:63], v53, s[20:23], 0 offen")
    a.label("PREP_D")
    a("s_mov_b64 exec, -1")
    a("s_waitcnt lgkmcnt(0)")
    a("s_barrier")
    a("s_mov_b64 exec, s[30:31]")
    a.branch("s_cbranch_execz PREP_E")
    for i in range(4):
        a(f"ds_read_b32 v{12+i}, v{12+i}")
    a("s_waitcnt lgkmcnt(0)")
    for i in range(4):
        a(f"v_add_u32 v{12+i}, v{12+i}, v{20+i}")
        a(f"v_lshlrev_b32 v{12+i}, 3, v{12+i}")
        a(f"ds_write_b64 v{12+i}, v[{24+2*i}:{25+2*i}] offset:{PL_STAGE}")
    a.label("PREP_E")
    a("s_mov_b64 exec, -1")
    a("s_waitcnt lgkmcnt(0)")
    a("s_barrier")
    srd(a, 40, 8, 9, SLOTS_BYTES, WS_SLOTS)
    a("v_lshlrev_b32 v2, 3, v0")
    for k in range(4):
        a(f"ds_read_b64 v[{24+2*k}:{25+2*k}], v2 offset:{PL_STAGE + k*8192}")
    a("s_waitcnt lgkmcnt(0)")
    for k in range(4):
        a(f"v_lshrrev_b32 v{12+k}, 23, v{24+2*k}")
        a(f"v_min_u32 v{12+k}, {NWG-1}, v{12+k}")
        a(f"v_lshlrev_b32 v{16+k}, 5, v{12+k}")
        a(f"ds_read_b32 v{16+k}, v{16+k}")
    a(f"s_mul_i32 s35, s2, {C}")
    a(f"s_lshl_b32 s36, s2, 5")
    a("s_waitcnt lgkmcnt(0)")
    a("s_mov_b64 s[44:45], 0")
    for k in range(4):
        a(f"v_add_u32 v20, {1024*k}, v0")
        a(f"v_sub_u32 v21, v20, v{16+k}")
        a(f"v_mul_u32_u24 v22, {P*SL}, v{12+k}")
        a(f"v_add3_u32 v22, v22, v21, s36")
        a(f"v_lshlrev_b32 v22, 3, v22")
        a(f"v_cmp_gt_u32 vcc, {C}, v20")
        a(f"s_mov_b64 s[46:47], vcc")
        a(f"v_cmp_gt_u32 vcc, {SL}, v21")
        a(f"s_and_b64 exec, vcc, s[46:47]")
        a(f"buffer_store_dwordx2 v[{24+2*k}:{25+2*k}], v22, s[40:43], 0 offen")
        a(f"s_andn2_b64 exec, s[46:47], vcc")
        a.branch(f"s_cbranch_execz PREP_NOVF{k}")
        a(f"v_add_u32 v22, s35, v20")
        a(f"v_lshlrev_b32 v22, 3, v22")
        a(f"buffer_store_dwordx2 v[{24+2*k}:{25+2*k}], v22, s[24:27], 0 offen")
        a.label(f"PREP_NOVF{k}")
        a("s_mov_b64 exec, -1")
    a.branch("s_branch PREP_END")

    a.label("PREP_W")
    a("s_load_dwordx4 s[12:15], s[0:1], 32")
    a("s_load_dwordx4 s[16:19], s[0:1], 48")
    a("s_load_dwordx2 s[20:21], s[0:1], 64")
    a("s_waitcnt lgkmcnt(0)")
    srd(a, 24, 8, 9, 65536)
    srd(a, 28, 12, 13, 8192)
    srd(a, 32, 14, 15, 8192)
    srd(a, 36, 16, 17, 2048)
    srd(a, 40, 18, 19, 8192)
    srd(a, 44, 20, 21, 8192)
    a("v_and_b32 v1, 31, v0")
    a("v_bfe_u32 v2, v0, 5, 1")
    a("v_bfe_u32 v3, v0, 6, 1")
    a("v_bfe_u32 v4, v0, 7, 2")
    a("v_lshlrev_b32 v5, 12, v2")
    a("v_lshl_add_u32 v5, v4, 10, v5")
    a("v_lshl_add_u32 v5, v1, 2, v5")
    a("v_lshl_add_u32 v5, v3, 1, v5")
    a("v_lshlrev_b32 v6, 4, v0")
    a("v_cmp_gt_u32 vcc, 512, v0")
    a("s_and_saveexec_b64 s[48:49], vcc")
    a.branch("s_cbranch_execz PREP_W2")
    mats = ((32, OFF_WB), (44, OFF_WV), (28, OFF_WA), (40, OFF_WU))
    for mi, (sd, off) in enumerate(mats):
        for j in range(8):
            a(f"buffer_load_ushort v{8+8*mi+j}, v5, s[{sd}:{sd+3}], 0 offen offset:{j*128}")
    a("v_mov_b32 v60, 0xbfb8aa3b")
    for mi, (sd, off) in enumerate(mats):
        a(f"s_waitcnt vmcnt({24-8*mi+mi})")
        for j in range(4):
            if FOLD and off == OFF_WB:
                a(f"v_lshlrev_b32 v{8+8*mi+2*j}, 16, v{8+8*mi+2*j}")
                a(f"v_lshlrev_b32 v{9+8*mi+2*j}, 16, v{9+8*mi+2*j}")
                a(f"v_mul_f32 v{8+8*mi+2*j}, v60, v{8+8*mi+2*j}")
                a(f"v_mul_f32 v{9+8*mi+2*j}, v60, v{9+8*mi+2*j}")
                a(f"v_cvt_pk_bf16_f32 v{40+4*mi+j}, v{8+8*mi+2*j}, v{9+8*mi+2*j}")
            else:
                a(f"v_lshl_or_b32 v{40+4*mi+j}, v{9+8*mi+2*j}, 16, v{8+8*mi+2*j}")
        a(f"s_mov_b32 s50, {off}")
        a(f"buffer_store_dwordx4 v[{40+4*mi}:{43+4*mi}], v6, s[24:27], s50 offen")
    a.label("PREP_W2")
    a("s_mov_b64 exec, -1")
    a("v_subrev_u32 v7, 512, v0")
    a("v_cmp_gt_u32 vcc, 128, v7")
    a("s_and_saveexec_b64 s[48:49], vcc")
    a.branch("s_cbranch_execz PREP_END")
    a("v_lshlrev_b32 v5, 10, v2")
    a("v_lshl_add_u32 v5, v1, 2, v5")
    a("v_lshl_add_u32 v5, v3, 1, v5")
    a("v_lshlrev_b32 v6, 4, v7")
    for j in range(8):
        a(f"buffer_load_ushort v{8+j}, v5, s[36:39], 0 offen offset:{j*128}")
    a("s_waitcnt vmcnt(0)")
    a("v_mov_b32 v60, 0xbfb8aa3b")
    for j in range(4):
        if FOLD:
            a(f"v_lshlrev_b32 v{8+2*j}, 16, v{8+2*j}")
            a(f"v_lshlrev_b32 v{9+2*j}, 16, v{9+2*j}")
            a(f"v_mul_f32 v{8+2*j}, v60, v{8+2*j}")
            a(f"v_mul_f32 v{9+2*j}, v60, v{9+2*j}")
            a(f"v_cvt_pk_bf16_f32 v{16+j}, v{8+2*j}, v{9+2*j}")
        else:
            a(f"v_lshl_or_b32 v{16+j}, v{9+2*j}, 16, v{8+2*j}")
    a(f"s_mov_b32 s50, {OFF_WC}")
    a("buffer_store_dwordx4 v[16:19], v6, s[24:27], s50 offen")
    a.label("PREP_END")
    if X2 == "tl":
        a("s_mov_b64 exec, -1")
        a("s_waitcnt vmcnt(0) lgkmcnt(0)")
        a("s_memrealtime s[62:63]")
        a("s_waitcnt lgkmcnt(0)")
        srd(a, 52, 8, 9, 65536, 128 << 20)
        a("v_lshrrev_b32 v1, 6, v0")
        a("s_lshl_b32 s56, s2, 7")
        a("v_lshl_add_u32 v1, v1, 3, s56")
        a("v_mov_b32 v2, s60")
        a("v_mov_b32 v3, s62")
        a("buffer_store_dwordx2 v[2:3], v1, s[52:55], 0 offen")
    a.label("PREP_END2")
    a("s_endpgm")
    return a.text()


NSLOT = QCAP + 128
L_AP = 0
L_REC = 8192
L_DL = L_REC + NSLOT * 8
L_MLO = L_DL + NSLOT * 4
L_MHI = L_MLO + NSLOT * 2
LDSW = L_MHI + NSLOT * 2
assert LDSW % 256 == 0, LDSW
L_DSC = 0
L_LENW = WPW * 1024
L_TJ = L_LENW + 1024
L_WBASE = L_TJ + 256
LDS_TOTAL = L_WBASE + WPW * LDSW
assert LDS_TOTAL <= 163840
INLOOP = [False]


def mfma32(a, d, x, y, c):
    if X2 == "nomfma" and INLOOP[0]:
        return
    a(f"v_mfma_f32_32x32x16_bf16 {vr(d,16)}, {vr(x,4)}, {vr(y,4)}, {c}")


def gen_main():
    a = Asm()
    R = VAlloc(0, 256)
    R.alloc("tid")
    vL = R.alloc("lane")
    vI = R.alloc("i")
    vH = R.alloc("h")
    vH64 = R.alloc("h64")
    vH16 = R.alloc("h16")
    vN4 = R.alloc("n4")
    vSh = R.alloc("sh")
    vRecA = R.alloc("recaddr")
    vDlA = R.alloc("dladdr")
    vMkA = R.alloc("maskaddr")
    vK = R.alloc("K")
    RC = R.alloc("RC", 2, 2)
    vM1 = R.alloc("m10001")
    vB1 = R.alloc("b3f80")
    WB = R.alloc("WB", 32, 4)
    WV = R.alloc("WV", 32, 4)
    WC = R.alloc("WC", 8, 4)
    DEN = R.alloc("DEN", 32, 4)
    NUM = R.alloc("NUM", 32, 4)
    G = R.alloc("G", 16, 4)
    H = R.alloc("H", 16, 4)
    G1 = R.alloc("G1", 16, 4)
    AD = H
    OH = R.alloc("OH", 8, 4)
    GB = R.alloc("GB", 40, 4)
    vMX = R.alloc("maskx")
    vME = R.alloc("maske")
    print("vgprs used:", R.next, file=sys.stderr)

    SX, SEA, SW, SD, SR_, SO, SS = 8, 12, 16, 20, 24, 28, 56
    s_wv, s_G, s_ns, s_T, s_R, s_NS, s_lds, s_tmp, s_Tn, s_mx, s_q, s_lw = 36, 37, 38, 40, 41, 42, 43, 45, 46, 47, 48, 49

    def ps(k):
        if X2 == "pro":
            a(f"s_memtime s[{60+2*k}:{61+2*k}]")
            a("s_waitcnt lgkmcnt(0)")

    a.raw(".globl main_kernel\n.p2align 8\n.type main_kernel,@function\nmain_kernel:")
    a(f"s_cmp_ge_u32 s2, {NWG}")
    a.branch("s_cbranch_scc1 MAIN_END")
    ps(0)
    if X2 == "tl":
        a("s_memrealtime s[60:61]")
    a("s_load_dwordx4 s[4:7], s[0:1], 0")
    a("s_load_dwordx2 s[32:33], s[0:1], 72")
    a("s_load_dwordx2 s[34:35], s[0:1], 88")
    a(f"v_lshrrev_b32 v{vL}, 6, v0")
    a(f"v_readfirstlane_b32 s{s_wv}, v{vL}")
    a(f"v_and_b32 v{vL}, 63, v0")
    a(f"v_and_b32 v{vI}, 31, v0")
    a(f"v_bfe_u32 v{vH}, v0, 5, 1")
    a(f"v_lshlrev_b32 v{vH64}, 6, v{vH}")
    a(f"v_lshlrev_b32 v{vH16}, 4, v{vH}")
    a(f"v_and_b32 v{vSh}, 15, v0")
    a(f"s_lshl_b32 s{s_G}, s2, 3")
    a(f"s_add_u32 s{s_G}, s{s_G}, s{s_wv}")
    a(f"s_mul_i32 s{s_ns}, s{s_G}, {GN}")
    a(f"s_mul_i32 s{s_lds}, s{s_wv}, {LDSW}")
    a(f"s_add_u32 s{s_lds}, s{s_lds}, {L_WBASE}")
    a(f"s_mov_b32 s{s_q}, {QCAP}")
    a(f"s_mov_b32 s{s_lw}, {LDSW}")
    a(f"v_mov_b32 v{vK}, 0xbfb8aa3b")
    a(f"v_mov_b32 v{vM1}, 0x10001")
    a(f"v_mov_b32 v{vB1}, 0x3f80")
    a(f"v_mov_b32 v{vMX}, 0x007fff80")
    a(f"v_mov_b32 v{vME}, 0xffffffe0")
    a(f"v_lshlrev_b32 v{vN4}, 2, v{vI}")
    a(f"v_add_u32 v{vN4}, s{s_lds}, v{vN4}")
    a("s_waitcnt lgkmcnt(0)")
    srd(a, SD, 34, 35, DESC_BYTES, WS_DESC)
    srd(a, SW, 34, 35, OFF_WC + 2048)
    srd(a, SS, 34, 35, SLOTS_BYTES, WS_SLOTS)
    SLT = GB
    vtmp = GB + 32
    vD = G
    WS0 = H
    a(f"s_mul_i32 s{s_tmp}, s2, {P*32}")
    a(f"v_lshl_add_u32 v{vtmp}, v0, 5, s{s_tmp}")
    a(f"v_mov_b32 v{vtmp+3}, {BIG}")
    a(f"v_cmp_gt_u32 vcc, {P}, v0")
    a(f"v_cndmask_b32 v{vtmp}, v{vtmp+3}, v{vtmp}, vcc")
    a(f"buffer_load_dwordx4 {vr(vD,4)}, v{vtmp}, s[{SD}:{SD+3}], 0 offen")
    a(f"buffer_load_dwordx4 {vr(vD+4,4)}, v{vtmp}, s[{SD}:{SD+3}], 0 offen offset:16")
    a(f"v_lshlrev_b32 v{vtmp+2}, 4, v0")
    for k in range(4):
        a(f"s_mov_b32 s{s_tmp}, {k*8192}")
        a(f"buffer_load_dwordx4 {vr(WS0+4*k,4)}, v{vtmp+2}, s[{SW}:{SW+3}], s{s_tmp} offen")

    def slot_addr():
        a(f"v_lshrrev_b32 v{vtmp+2}, 3, v0")
        a(f"v_lshlrev_b32 v{vtmp+2}, 8, v{vtmp+2}")
        a(f"v_and_b32 v{vtmp+3}, 7, v0")
        a(f"v_lshl_add_u32 v{vtmp+2}, v{vtmp+3}, 4, v{vtmp+2}")

    def load_slots():
        slot_addr()
        for k in range(4):
            a(f"s_mul_i32 s{s_tmp}, s2, {P*SL*8}")
            a(f"s_add_u32 s{s_tmp}, s{s_tmp}, {k*16384}")
            a(f"buffer_load_dwordx4 {vr(SLT+4*k,4)}, v{vtmp+2}, s[{SS}:{SS+3}], s{s_tmp} offen")

    srd(a, SX, 4, 5, N * 128)
    srd(a, SEA, 6, 7, E * 32)
    srd(a, SW, 34, 35, 65536)
    srd(a, SR_, 34, 35, RECS_BYTES, WS_RECS)
    srd(a, SO, 32, 33, N * 128)
    for k in range(32):
        a(f"v_mov_b32 v{DEN+k}, 0")
    a("s_waitcnt vmcnt(4)")
    a(f"v_lshlrev_b32 v{vtmp}, 2, v0")
    a(f"v_lshrrev_b32 v{vtmp+4}, 16, v{vD}")
    for j in range(1, 8):
        a(f"v_lshrrev_b32 v{vtmp+5}, 16, v{vD+j}")
        a(f"v_add_u32 v{vtmp+4}, v{vtmp+4}, v{vtmp+5}")
    a(f"v_lshl_or_b32 v{vtmp+4}, v{vD}, 16, v{vtmp+4}")
    a(f"v_cmp_gt_u32 vcc, 256, v0")
    a("s_and_saveexec_b64 s[52:53], vcc")
    a.branch("s_cbranch_execz DSC_SKIP")
    for j in range(WPW):
        a(f"ds_write_b32 v{vtmp}, v{vD+j} offset:{L_DSC + j*1024}")
    a(f"ds_write_b32 v{vtmp}, v{vtmp+4} offset:{L_LENW}")
    a.label("DSC_SKIP")
    a("s_mov_b64 exec, -1")
    a("s_waitcnt vmcnt(0)")
    for k in range(4):
        if k == 3:
            a(f"v_cmp_gt_u32 vcc, 128, v0")
            a("s_and_saveexec_b64 s[52:53], vcc")
            a.branch("s_cbranch_execz WST_SKIP")
        a(f"ds_write_b128 v{vtmp+2}, {vr(WS0+4*k,4)} offset:{L_WBASE + k*LDSW + L_AP if k < 3 else L_WBASE + L_REC}")
    a.label("WST_SKIP")
    a("s_mov_b64 exec, -1")
    a("s_waitcnt lgkmcnt(0)")
    a("s_barrier")
    ps(1)
    load_slots()
    WAt = NUM
    XO = G
    vC = G1
    vS = G1 + 4
    vLw = G1 + 8
    vTot = G1 + 12
    vInc = G1 + 13
    vB = OH
    a(f"s_lshl_b32 s{s_tmp}, s{s_wv}, 10")
    a(f"v_lshl_add_u32 v{vtmp}, v{vL}, 2, s{s_tmp}")
    a(f"v_lshlrev_b32 v{vtmp+1}, 2, v{vL}")
    for k in range(4):
        a(f"ds_read_b32 v{vD+k}, v{vtmp} offset:{L_DSC + k*256}")
    for k in range(4):
        a(f"ds_read_b32 v{vLw+k}, v{vtmp+1} offset:{L_LENW + k*256}")
    a(f"v_lshlrev_b32 v{vtmp+2}, 4, v{vL}")
    for (base, off) in ((WAt, OFF_WA), (WB, OFF_WB), (WV, OFF_WV)):
        for k in range(8):
            a(f"ds_read_b128 {vr(base+4*k,4)}, v{vtmp+2} offset:{L_WBASE + (off//8192)*LDSW + L_AP + k*1024}")
    for c in range(2):
        a(f"ds_read_b128 {vr(WC+4*c,4)}, v{vtmp+2} offset:{L_WBASE + L_REC + c*1024}")
    a("s_waitcnt lgkmcnt(15)")
    for k in range(4):
        a(f"v_lshrrev_b32 v{vC+k}, 16, v{vD+k}")
        a(f"v_and_b32 v{vS+k}, 0xffff, v{vD+k}")
    a(f"v_add_u32 v{vTot}, v{vC}, v{vC+1}")
    a(f"v_add3_u32 v{vTot}, v{vTot}, v{vC+2}, v{vC+3}")
    a(f"v_mov_b32 v{vInc}, v{vTot}")
    wave_scan(a, vInc)
    a(f"v_readlane_b32 s{s_T}, v{vInc}, 63")
    a(f"v_sub_u32 v{vB}, v{vInc}, v{vTot}")
    a(f"v_add_u32 v{vB+1}, v{vB}, v{vC}")
    a(f"v_add_u32 v{vB+2}, v{vB+1}, v{vC+1}")
    a(f"v_add_u32 v{vB+3}, v{vB+2}, v{vC+2}")
    for k in range(4):
        a(f"v_lshrrev_b32 v{vLw+k}, 16, v{vLw+k}")
        a(f"v_sub_u32 v{vB+k}, v{vB+k}, v{vS+k}")
        a(f"v_add_u32 v{vB+k}, v{vB+k}, v{vLw+k}")
        a(f"ds_write_b32 v{vtmp}, v{vB+k} offset:{L_DSC + k*256}")
    a(f"v_mov_b32 v{vTot}, s{s_T}")
    a(f"s_lshl_b32 s{s_tmp}, s{s_wv}, 2")
    a(f"v_mov_b32 v{vInc}, s{s_tmp}")
    a(f"ds_write_b32 v{vInc}, v{vTot} offset:{L_TJ}")
    a("s_waitcnt lgkmcnt(0)")
    a("s_barrier")
    ps(2)
    a(f"v_mov_b32 v{vInc}, 0")
    a(f"ds_read_b128 {vr(G1,4)}, v{vInc} offset:{L_TJ}")
    a(f"ds_read_b128 {vr(G1+4,4)}, v{vInc} offset:{L_TJ+16}")
    a("s_waitcnt lgkmcnt(0)")
    a(f"v_max3_u32 v{G1}, v{G1}, v{G1+1}, v{G1+2}")
    a(f"v_max3_u32 v{G1}, v{G1}, v{G1+3}, v{G1+4}")
    a(f"v_max3_u32 v{G1}, v{G1}, v{G1+5}, v{G1+6}")
    a(f"v_max_u32 v{G1}, v{G1}, v{G1+7}")
    a(f"v_readfirstlane_b32 s{s_mx}, v{G1}")
    a(f"s_mov_b32 s{s_R}, 0")

    a.label("ROUND")
    a(f"s_sub_u32 s{s_Tn}, s{s_T}, s{s_R}")
    a(f"s_cselect_b32 s{s_Tn}, 0, s{s_Tn}")
    a(f"s_min_u32 s{s_Tn}, s{s_Tn}, {QCAP}")
    vt = H
    vi, vad, vval, vdum = vt, vt + 1, vt + 2, vt + 4
    a(f"v_mov_b32 v{vdum}, 0x007fff80")
    a(f"v_mov_b32 v{vdum+1}, {BIG}")
    a(f"v_add_u32 v{vi}, s{s_Tn}, v{vL}")
    a(f"v_lshl_add_u32 v{vad}, v{vi}, 3, s{s_lds}")
    a(f"ds_write_b64 v{vad}, {vr(vdum,2)} offset:{L_REC}")
    a(f"ds_write_b64 v{vad}, {vr(vdum,2)} offset:{L_REC+512}")
    a(f"v_lshl_add_u32 v{vad}, v{vi}, 2, s{s_lds}")
    a(f"v_mov_b32 v{vval}, {31*256}")
    a(f"ds_write_b32 v{vad}, v{vval} offset:{L_DL}")
    a(f"ds_write_b32 v{vad}, v{vval} offset:{L_DL+256}")
    a(f"v_lshl_add_u32 v{vad}, v{vi}, 1, s{s_lds}")
    a(f"v_mov_b32 v{vval}, 0")
    a(f"ds_write_b16 v{vad}, v{vval} offset:{L_MLO}")
    a(f"ds_write_b16 v{vad}, v{vval} offset:{L_MLO+128}")
    a(f"ds_write_b16 v{vad}, v{vval} offset:{L_MHI}")
    a(f"ds_write_b16 v{vad}, v{vval} offset:{L_MHI+128}")
    vT4 = vt + 6
    vS0 = vt + 7
    vSR0 = vt + 8
    vLen = G1
    vDl = OH
    vj, vpos, vwb, va = vt + 9, vt + 10, vt + 11, vt + 15
    vLDSW = vt + 3
    vS1 = RC
    vSR1 = RC + 1
    a(f"v_lshrrev_b32 v{vT4}, 3, v0")
    a(f"v_lshlrev_b32 v{vT4}, 2, v{vT4}")
    a(f"v_and_b32 v{vS0}, 7, v0")
    a(f"v_lshlrev_b32 v{vS0}, 1, v{vS0}")
    for k in range(4):
        a(f"ds_read_b32 v{vLen+k}, v{vT4} offset:{L_LENW + k*256}")
    a(f"v_mov_b32 v{vLDSW}, {LDSW}")
    slot_addr()
    a(f"v_mov_b32 v{vtmp+3}, {BIG}")
    a(f"v_add_u32 v{vS1}, 16, v{vS0}")
    a("s_waitcnt lgkmcnt(0)")
    for k in range(4):
        a(f"v_and_b32 v{vLen+k}, 0xffff, v{vLen+k}")
    for k in range(4):
        a(f"v_cmp_lt_u32 vcc, v{vS1}, v{vLen+k}")
        a(f"v_cndmask_b32 v{vtmp+4+k}, v{vtmp+3}, v{vtmp+2}, vcc")
        a(f"s_mul_i32 s{s_tmp}, s2, {P*SL*8}")
        a(f"s_add_u32 s{s_tmp}, s{s_tmp}, {k*16384 + 128}")
        a(f"buffer_load_dwordx4 {vr(SLT+16+4*k,4)}, v{vtmp+4+k}, s[{SS}:{SS+3}], s{s_tmp} offen")

    def scatter(w0, w1, vdelta, vsr, valid_cmp):
        a(f"v_add_u32 v{vpos}, v{vdelta}, v{vsr}")
        a(f"v_and_b32 v{vj}, 7, v{w1}")
        a(f"v_mul_u32_u24 v{vwb}, v{vj}, v{vLDSW}")
        valid_cmp()
        a(f"v_cmp_gt_u32 s[52:53], s{s_q}, v{vpos}")
        a(f"v_lshl_add_u32 v{va}, v{vpos}, 3, v{vwb}")
        a(f"s_and_b64 exec, vcc, s[52:53]")
        a(f"ds_write_b64 v{va}, v[{w0}:{w1}] offset:{L_WBASE + L_REC}")
        a("s_mov_b64 exec, -1")

    for lvl in range(2):
        a(f"s_waitcnt vmcnt(4)")
        if lvl == 1:
            a(f"s_cmp_eq_u32 s{s_R}, 0")
            a.branch("s_cbranch_scc1 L2_OK")
            a("s_waitcnt vmcnt(0)")
            a.label("L2_OK")
        if lvl == 0:
            ps(3)
        a(f"v_add_u32 v{vS1}, 1, v{vS0}")
        a(f"v_subrev_u32 v{vSR0}, s{s_R}, v{vS0}")
        a(f"v_add_u32 v{vSR1}, 1, v{vSR0}")
        for k in range(4):
            for e in range(2):
                w1 = SLT + 16 * lvl + 4 * k + 2 * e + 1
                a(f"v_and_b32 v{vj}, 7, v{w1}")
                a(f"v_lshl_add_u32 v{va}, v{vj}, 10, v{vT4}")
                a(f"ds_read_b32 v{vDl+2*k+e}, v{va} offset:{L_DSC + k*256}")
        a("s_waitcnt lgkmcnt(0)")
        for k in range(4):
            for e in range(2):
                w0 = SLT + 16 * lvl + 4 * k + 2 * e
                scatter(w0, w0 + 1, vDl + 2 * k + e, vSR0 if e == 0 else vSR1,
                        lambda k=k, e=e: a(f"v_cmp_lt_u32 vcc, v{vS0 if e == 0 else vS1}, v{vLen+k}"))
        if lvl == 0:
            a(f"v_add_u32 v{vS0}, 16, v{vS0}")
            XO = GB
            a(f"s_cmp_lg_u32 s{s_R}, 0")
            a.branch("s_cbranch_scc1 XO_SKIP")
            a(f"v_add_u32 v{va}, s{s_ns}, v{vI}")
            a(f"v_lshl_add_u32 v{va}, v{va}, 7, v{vH64}")
            for s in range(4):
                a(f"buffer_load_dwordx4 {vr(XO+4*s,4)}, v{va}, s[{SX}:{SX+3}], 0 offen offset:{16*s}")
            a.label("XO_SKIP")
    vo_len, vo_s, vo_base = G1, G1 + 1, G1 + 2
    vo_rec = G1 + 4
    vo_d, vo_sr = G1 + 6, G1 + 7
    a(f"v_lshlrev_b32 v{vad}, 2, v0")
    a(f"v_and_b32 v{vad}, 0x3ff, v{vad}")
    a(f"ds_read_b32 v{vo_len}, v{vad} offset:{L_LENW}")
    a("s_waitcnt lgkmcnt(0)")
    a(f"v_lshrrev_b32 v{vo_base}, 16, v{vo_len}")
    a(f"v_and_b32 v{vo_len}, 0xffff, v{vo_len}")
    a(f"v_cmp_gt_u32 vcc, 256, v0")
    a(f"v_cndmask_b32 v{vo_len}, 0, v{vo_len}, vcc")
    a(f"v_mul_u32_u24 v{vo_s}, {C}, v0")
    a(f"v_add_u32 v{vo_base}, v{vo_base}, v{vo_s}")
    a(f"v_mov_b32 v{vo_s}, {SL}")
    a.label("OVF")
    a(f"v_cmp_lt_u32 vcc, v{vo_s}, v{vo_len}")
    a("s_nop 1")
    a("s_cbranch_vccz OVF_DONE")
    a(f"v_add_u32 v{vo_d}, v{vo_base}, v{vo_s}")
    a(f"v_lshlrev_b32 v{vo_d}, 3, v{vo_d}")
    a(f"v_mov_b32 v{vo_sr}, {BIG}")
    a(f"v_cndmask_b32 v{vo_d}, v{vo_sr}, v{vo_d}, vcc")
    a(f"buffer_load_dwordx2 {vr(vo_rec,2)}, v{vo_d}, s[{SR_}:{SR_+3}], 0 offen")
    a("s_waitcnt vmcnt(0)")
    a(f"v_and_b32 v{vj}, 7, v{vo_rec+1}")
    a(f"v_lshl_add_u32 v{va}, v{vj}, 10, v{vad}")
    a(f"ds_read_b32 v{vo_d}, v{va} offset:{L_DSC}")
    a(f"v_subrev_u32 v{vo_sr}, s{s_R}, v{vo_s}")
    a("s_waitcnt lgkmcnt(0)")
    scatter(vo_rec, vo_rec + 1, vo_d, vo_sr, lambda: a(f"v_cmp_lt_u32 vcc, v{vo_s}, v{vo_len}"))
    a(f"v_add_u32 v{vo_s}, 1, v{vo_s}")
    a.branch("s_branch OVF")
    a.label("OVF_DONE")
    ps(4)
    a("s_waitcnt lgkmcnt(0)")
    a("s_barrier")
    ps(5)
    NM = QCAP // 64
    a(f"v_lshl_add_u32 v{RC}, v{vL}, 3, s{s_lds}")
    for m in range(NM):
        a(f"ds_read_b32 v{G+m}, v{RC} offset:{L_REC + m*512}")
    a(f"v_lshl_add_u32 v{G1}, v{vL}, 2, s{s_lds}")
    a(f"v_lshl_add_u32 v{G1+1}, v{vL}, 1, s{s_lds}")
    a("s_waitcnt lgkmcnt(0)")
    for m in range(NM):
        a(f"v_add_u32 v{G1+2}, {64*m}, v{vL}")
        a(f"v_cmp_gt_u32 vcc, s{s_Tn}, v{G1+2}")
        a(f"s_and_b64 exec, exec, vcc")
        a.branch(f"s_cbranch_execz DRV_DONE")
        a(f"v_and_b32 v{G+m}, 31, v{G+m}")
        a(f"v_lshlrev_b32 v{G1+3}, v{G+m}, 1")
        a(f"v_lshrrev_b32 v{G1+4}, 16, v{G1+3}")
        a(f"v_lshlrev_b32 v{G+m}, 8, v{G+m}")
        a(f"ds_write_b32 v{G1}, v{G+m} offset:{L_DL + m*256}")
        a(f"ds_write_b16 v{G1+1}, v{G1+3} offset:{L_MLO + m*128}")
        a(f"ds_write_b16 v{G1+1}, v{G1+4} offset:{L_MHI + m*128}")
    a.label("DRV_DONE")
    a("s_mov_b64 exec, -1")
    ps(6)
    a(f"s_add_u32 s{s_NS}, s{s_Tn}, 31")
    a(f"s_lshr_b32 s{s_NS}, s{s_NS}, 5")
    a(f"v_lshl_add_u32 v{vRecA}, v{vI}, 3, s{s_lds}")
    a(f"v_lshl_add_u32 v{vDlA}, v{vH}, 4, s{s_lds}")
    a(f"v_bfe_u32 v{RC}, v{vI}, 4, 1")
    a(f"v_mul_u32_u24 v{RC}, {L_MHI-L_MLO}, v{RC}")
    a(f"v_lshl_add_u32 v{vMkA}, v{vH}, 3, s{s_lds}")
    a(f"v_add_u32 v{vMkA}, v{vMkA}, v{RC}")

    def gathers(b):
        base = GB + 20 * b
        a(f"v_and_or_b32 v{RC}, v{RC}, v{vMX}, v{vH64}")
        a(f"v_and_or_b32 v{RC+1}, v{RC+1}, v{vME}, v{vH16}")
        for s in range(4):
            a(f"buffer_load_dwordx4 {vr(base+4*s,4)}, v{RC}, s[{SX}:{SX+3}], 0 offen offset:{16*s}")
        a(f"buffer_load_dwordx4 {vr(base+16,4)}, v{RC+1}, s[{SEA}:{SEA+3}], 0 offen nt")

    a(f"ds_read_b64 {vr(RC,2)}, v{vRecA} offset:{L_REC}")
    a("s_waitcnt lgkmcnt(0)")
    gathers(1)
    a(f"s_cmp_lg_u32 s{s_R}, 0")
    a.branch("s_cbranch_scc1 AP_DONE")
    a("s_waitcnt vmcnt(5)")
    a(f"v_lshl_add_u32 v{RC}, v{vH}, 10, v{vN4}")
    for c in range(2):
        d = H if c == 0 else G1
        for s in range(4):
            mfma32(a, d, XO + 4 * s, WAt + 4 * (2 * s + c), "0" if s == 0 else vr(d, 16))
    for c in range(2):
        d = H if c == 0 else G1
        for r in range(16):
            row = 8 * (r >> 2) + (r & 3)
            if FOLD:
                a(f"v_mul_f32 v{d+r}, v{vK}, v{d+r}")
            a(f"ds_write_b32 v{RC}, v{d+r} offset:{L_AP + row*256 + c*128}")
    for k in range(32):
        a(f"v_mov_b32 v{NUM+k}, 0")
    a.label("AP_DONE")
    ps(7)
    a(f"s_cmp_eq_u32 s{s_NS}, 0")
    a.branch("s_cbranch_scc1 LOOP_DONE")
    if EXP == "noloop":
        a.branch("s_branch EPILOGUE")
    if EXP in ("nogather", "noea"):
        a(f"s_mov_b32 s{SEA+2}, 0")
    if EXP in ("nogather", "nox"):
        a(f"s_mov_b32 s{SX+2}, 0")

    def merge(valu, mf, first_gap=0):
        n, m = len(valu), len(mf)
        pos = [first_gap + (k * (n - first_gap)) // max(m, 1) for k in range(m)]
        k = 0
        for idx, ins in enumerate(valu):
            while k < m and pos[k] <= idx:
                mf[k]()
                k += 1
            a(ins)
        while k < m:
            mf[k]()
            k += 1

    def valu_g(g):
        L = []
        for r in range(16):
            if not FOLD:
                L.append(f"v_mul_f32 v{g+r}, v{vK}, v{g+r}")
        for r in range(16):
            L.append(f"v_exp_f32 v{g+r}, v{g+r}")
        for r in range(16):
            L.append(f"v_add_f32 v{g+r}, 1.0, v{g+r}")
        for r in range(16):
            L.append(f"v_rcp_f32 v{g+r}, v{g+r}")
        return L

    def pc(g):
        for r in range(16):
            a(f"v_mul_f32 v{H+r}, v{H+r}, v{g+r}")
        for j in range(8):
            a(f"v_cvt_pk_bf16_f32 v{g+j}, v{g+2*j}, v{g+2*j+1}")
        for j in range(8):
            a(f"v_cvt_pk_bf16_f32 v{H+j}, v{H+2*j}, v{H+2*j+1}")

    def gchain(b, c, g):
        base = GB + 20 * b
        L = [(lambda s=s: mfma32(a, g, base + 4 * s, WB + 4 * (2 * s + c), vr(g, 16))) for s in range(4)]
        L.append(lambda: mfma32(a, g, base + 16, WC + 4 * c, vr(g, 16)))
        return L

    def hchain(b, c):
        base = GB + 20 * b
        return [(lambda s=s: mfma32(a, H, base + 4 * s, WV + 4 * (2 * s + c), "0" if s == 0 else vr(H, 16))) for s in range(4)]

    def rchain(c, g):
        L = []
        for s in range(2):
            L.append(lambda s=s: mfma32(a, DEN + 16 * c, OH + 4 * s, g + 4 * s, vr(DEN + 16 * c, 16)))
            L.append(lambda s=s: mfma32(a, NUM + 16 * c, OH + 4 * s, H + 4 * s, vr(NUM + 16 * c, 16)))
        return L

    def step(b):
        a(f"ds_read_b64 {vr(RC,2)}, v{vRecA} offset:{L_REC + 256}")
        for q in range(4):
            a(f"ds_read_b128 {vr(AD+4*q,4)}, v{vDlA} offset:{L_DL + q*32}")
        for q in range(4):
            a(f"ds_read_b64 {vr(OH+2*q,2)}, v{vMkA} offset:{L_MLO + q*16}")
        a("s_waitcnt lgkmcnt(8)")
        gathers(1 - b)
        a("s_waitcnt lgkmcnt(4)")
        for k in range(16):
            a(f"v_add_u32 v{AD+k}, v{AD+k}, v{vN4}")
        for r in range(16):
            a(f"ds_read_b32 v{G+r}, v{AD+r} offset:{L_AP}")
        for r in range(16):
            a(f"ds_read_b32 v{G1+r}, v{AD+r} offset:{L_AP + 128}")
        a("s_waitcnt vmcnt(5) lgkmcnt(15)")
        ohl = []
        for k in range(8):
            ohl.append(f"v_lshrrev_b32 v{OH+k}, v{vSh}, v{OH+k}")
        for k in range(8):
            ohl.append(f"v_and_b32 v{OH+k}, v{vM1}, v{OH+k}")
        for k in range(8):
            ohl.append(f"v_mul_u32_u24 v{OH+k}, v{vB1}, v{OH+k}")
        ohl.append(f"v_add_u32 v{vRecA}, 256, v{vRecA}")
        ohl.append(f"v_add_u32 v{vDlA}, 128, v{vDlA}")
        ohl.append(f"v_add_u32 v{vMkA}, 64, v{vMkA}")
        merge(ohl, gchain(b, 0, G))
        a("s_waitcnt lgkmcnt(0)")
        merge(valu_g(G), hchain(b, 0) + gchain(b, 1, G1))
        pc(G)
        merge(valu_g(G1), rchain(0, G) + hchain(b, 1))
        pc(G1)
        for f in rchain(1, G1):
            f()

    a.label("LOOP")
    INLOOP[0] = True
    for b in (1, 0):
        step(b)
        a(f"s_sub_u32 s{s_NS}, s{s_NS}, 1")
        a(f"s_cmp_eq_u32 s{s_NS}, 0")
        if b == 1:
            a.branch("s_cbranch_scc1 LOOP_DONE")
        else:
            a.branch("s_cbranch_scc0 LOOP")
    a.label("LOOP_DONE")
    INLOOP[0] = False
    a("s_waitcnt vmcnt(0) lgkmcnt(0)")
    a(f"s_add_u32 s{s_R}, s{s_R}, {QCAP}")
    a(f"s_cmp_ge_u32 s{s_R}, s{s_mx}")
    a.branch("s_cbranch_scc1 EPILOGUE")
    a("s_barrier")
    load_slots()
    a("s_waitcnt vmcnt(0)")
    a.branch("s_branch ROUND")

    a.label("EPILOGUE")
    a("s_waitcnt vmcnt(0) lgkmcnt(0)")
    if EXP in ("nogather", "nox"):
        a(f"s_mov_b32 s{SX+2}, {N*128}")
    WUt = WB
    XD = WV
    VO = WV + 16
    XO = GB
    a(f"v_lshlrev_b32 v{vtmp+2}, 4, v{vL}")
    for k in range(8):
        if k % 4 == 0:
            a(f"s_mov_b32 s{s_tmp}, {OFF_WU + k*1024}")
        a(f"buffer_load_dwordx4 {vr(WUt+4*k,4)}, v{vtmp+2}, s[{SW}:{SW+3}], s{s_tmp} offen offset:{(k%4)*1024}")
    a(f"v_add_u32 v{vtmp+1}, s{s_ns}, v{vI}")
    a(f"v_lshl_add_u32 v{vtmp+1}, v{vtmp+1}, 7, v{vH64}")
    for s in range(4):
        a(f"buffer_load_dwordx4 {vr(XO+4*s,4)}, v{vtmp+1}, s[{SX}:{SX+3}], 0 offen offset:{16*s}")
    a(f"v_lshl_add_u32 v{vtmp}, v{vH}, 2, s{s_ns}")
    a(f"v_lshlrev_b32 v{vtmp}, 7, v{vtmp}")
    a(f"v_lshl_add_u32 v{vtmp}, v{vI}, 2, v{vtmp}")
    for r in range(16):
        row = 8 * (r >> 2) + (r & 3)
        a(f"buffer_load_dword v{XD+r}, v{vtmp}, s[{SX}:{SX+3}], 0 offen offset:{row*128}")
    a(f"v_mov_b32 v{vtmp+3}, {BIG}")
    a(f"v_lshlrev_b32 v{vtmp+1}, 2, v{vH}")
    for r in range(16):
        row = 8 * (r >> 2) + (r & 3)
        a(f"v_cmp_gt_u32 vcc, {GN-row if GN-row>0 else 0}, v{vtmp+1}")
        a(f"v_add_u32 v{VO+r}, {row*128}, v{vtmp}")
        a(f"v_cndmask_b32 v{VO+r}, v{vtmp+3}, v{VO+r}, vcc")
    a(f"v_mov_b32 v{vtmp+3}, 0x358637bd")
    for k in range(32):
        a(f"v_add_f32 v{DEN+k}, v{vtmp+3}, v{DEN+k}")
    for k in range(32):
        a(f"v_rcp_f32 v{DEN+k}, v{DEN+k}")
    a("s_waitcnt vmcnt(16)")
    for c in range(2):
        d = G if c == 0 else H
        for s in range(4):
            mfma32(a, d, XO + 4 * s, WUt + 4 * (2 * s + c), "0" if s == 0 else vr(d, 16))
    for c in range(2):
        d = G if c == 0 else H
        for r in range(16):
            a(f"v_fma_f32 v{d+r}, v{NUM+16*c+r}, v{DEN+16*c+r}, v{d+r}")
        for r in range(16):
            a(f"v_max_f32 v{d+r}, 0, v{d+r}")
    a("s_waitcnt vmcnt(0)")
    for r in range(16):
        a(f"v_lshlrev_b32 v{G1}, 16, v{XD+r}")
        a(f"v_and_b32 v{G1+1}, 0xffff0000, v{XD+r}")
        a(f"v_add_f32 v{G1}, v{G1}, v{G+r}")
        a(f"v_add_f32 v{G1+1}, v{G1+1}, v{H+r}")
        a(f"v_cvt_pk_bf16_f32 v{XD+r}, v{G1}, v{G1+1}")
        a(f"buffer_store_dword v{XD+r}, v{VO+r}, s[{SO}:{SO+3}], 0 offen")
    if X2 == "tl":
        a("s_waitcnt vmcnt(0) lgkmcnt(0)")
        a("s_memrealtime s[62:63]")
        a("s_waitcnt lgkmcnt(0)")
        srd(a, 52, 34, 35, 65536, (128 << 20) + 65536)
        a(f"s_lshl_b32 s{s_tmp}, s{s_G}, 3")
        a(f"v_mov_b32 v1, s{s_tmp}")
        a("v_mov_b32 v2, s60")
        a("v_mov_b32 v3, s62")
        a("buffer_store_dwordx2 v[2:3], v1, s[52:55], 0 offen")
    if X2 == "pro":
        a(f"s_lshr_b32 s84, s{s_G}, 3")
        a(f"s_cmp_lg_u32 s84, 37")
        a.branch("s_cbranch_scc1 MAIN_END")
        a("s_load_dwordx2 s[80:81], s[0:1], 80")
        a("s_waitcnt lgkmcnt(0)")
        a("s_mov_b32 s82, 256")
        a("s_mov_b32 s83, 0x00020000")
        a(f"s_lshl_b32 s85, s{s_wv}, 5")
        for k in range(7):
            a(f"s_sub_u32 s84, s{62+2*k}, s60")
            a(f"v_mov_b32 v{RC}, s84")
            a(f"v_mov_b32 v{RC+1}, {4*k}")
            a(f"buffer_store_dword v{RC}, v{RC+1}, s[80:83], s85 offen")
        a("s_waitcnt vmcnt(0)")
    a.label("MAIN_END")
    a("s_endpgm")
    return a.text()


def kd(name, vgpr, sgpr):
    acc = (vgpr + 3) // 4 * 4
    return f""".amdhsa_kernel {name}
  .amdhsa_next_free_vgpr {vgpr}
  .amdhsa_next_free_sgpr {sgpr}
  .amdhsa_accum_offset {acc}
  .amdhsa_group_segment_fixed_size 0
  .amdhsa_kernarg_size 96
  .amdhsa_user_sgpr_count 2
  .amdhsa_user_sgpr_kernarg_segment_ptr 1
  .amdhsa_system_sgpr_workgroup_id_x 1
.end_amdhsa_kernel
"""


def main():
    out = HEADER
    out += f"; @launch kernel=prep_kernel grid=({P+1},1,1) block=(1024,1,1) lds={PREP_LDS}\n"
    out += f"; @launch kernel=main_kernel grid=({NWG},1,1) block=({64*WPW},1,1) lds={LDS_TOTAL}\n"
    out += '.amdgcn_target "amdgcn-amd-amdhsa--gfx950"\n.text\n'
    out += gen_prep()
    out += gen_main()
    out += '.section .rodata,"a"\n.p2align 6\n'
    out += kd("prep_kernel", 64, 64)
    out += ".p2align 6\n"
    out += kd("main_kernel", 256, 96)
    path = sys.argv[1] if len(sys.argv) > 1 else "gather_scatter__edge_featured_mpnn_gatedgcn__graph.s"
    open(path, "w").write(out)


if __name__ == "__main__":
    main()
```

```python
import sys, os
from emit import Asm, VAlloc, vr, sr

N = 50000
E = 800000
P = 250
C = 3200
NG = 2000
GN = 25
WPW = 8
NWG = NG // WPW
QCAP = 512

OFF_WB, OFF_WV, OFF_WA, OFF_WC, OFF_WU = 0, 8192, 16384, 24576, 32768
WS_DESC = 65536
DESC_BYTES = P * NG * 4
WS_RECS = 4194304
RECS_BYTES = E * 8
SL = 32
WS_SLOTS = 16 << 20
SLOTS_BYTES = NWG * P * SL * 8
MAGIC25 = 171798692
BIG = 0x40000000
EXP = os.environ.get("EXP", "")
FOLD = os.environ.get("FOLD", "1") == "1"
X2 = os.environ.get("X2", "")

HEADER = open("gather_scatter__edge_featured_mpnn_gatedgcn__graph.s.ref").read().split("; @launch")[0]


def srd(a, d, lo, hi, nbytes, add=0):
    if add:
        a(f"s_add_u32 s{d}, s{lo}, {add}")
        a(f"s_addc_u32 s{d+1}, s{hi}, 0")
    else:
        a(f"s_mov_b32 s{d}, s{lo}")
        a(f"s_mov_b32 s{d+1}, s{hi}")
    a(f"s_and_b32 s{d+1}, s{d+1}, 0xffff")
    a(f"s_mov_b32 s{d+2}, {nbytes}")
    a(f"s_mov_b32 s{d+3}, 0x00020000")


def wave_scan(a, v):
    for sh in (1, 2, 4, 8):
        a(f"v_add_u32_dpp v{v}, v{v}, v{v} row_shr:{sh} row_mask:0xf bank_mask:0xf bound_ctrl:0")
    a(f"v_add_u32_dpp v{v}, v{v}, v{v} row_bcast:15 row_mask:0xa bank_mask:0xf")
    a(f"v_add_u32_dpp v{v}, v{v}, v{v} row_bcast:31 row_mask:0xc bank_mask:0xf")


PL_STAGE = NG * 4 + 64
PREP_LDS = PL_STAGE + 4096 * 8


def gen_prep():
    a = Asm()
    a.raw(".globl prep_kernel\n.p2align 8\n.type prep_kernel,@function\nprep_kernel:")
    a(f"s_cmp_gt_u32 s2, {P}")
    a.branch("s_cbranch_scc1 PREP_END2")
    if X2 == "tl":
        a("s_memrealtime s[60:61]")
    a("s_load_dwordx4 s[4:7], s[0:1], 16")
    a("s_load_dwordx2 s[8:9], s[0:1], 88")
    a(f"s_cmp_eq_u32 s2, {P}")
    a.branch("s_cbranch_scc1 PREP_W")
    a("s_waitcnt lgkmcnt(0)")
    srd(a, 12, 6, 7, E * 4)
    srd(a, 16, 4, 5, E * 4)
    srd(a, 20, 8, 9, DESC_BYTES, WS_DESC)
    srd(a, 24, 8, 9, RECS_BYTES, WS_RECS)
    a(f"s_mul_i32 s3, s2, {C*4}")
    a("v_lshl_add_u32 v1, v0, 4, s3")
    a(f"v_cmp_gt_u32 vcc, {C//4}, v0")
    a("s_mov_b64 s[30:31], vcc")
    a(f"v_cmp_gt_u32 vcc, {NG//4}, v0")
    a("s_mov_b64 s[32:33], vcc")
    for k in range(4):
        a(f"v_mov_b32 v{40+k}, 0")
    a("v_lshlrev_b32 v2, 4, v0")
    a("s_mov_b64 exec, s[30:31]")
    a.branch("s_cbranch_execz PREP_A")
    a("buffer_load_dwordx4 v[4:7], v1, s[12:15], 0 offen")
    a("buffer_load_dwordx4 v[8:11], v1, s[16:19], 0 offen")
    a.label("PREP_A")
    PF = os.environ.get("PF", "")
    if PF:
        a("s_mov_b64 exec, -1")
        a("s_load_dwordx4 s[44:47], s[0:1], 0")
        a("s_waitcnt lgkmcnt(0)")
        srd(a, 48, 46, 47, E * 32)
        srd(a, 52, 44, 45, N * 128)
        a(f"s_mul_i32 s56, s2, {C*32}")
        a("v_lshl_add_u32 v33, v0, 4, s56")
        if "e" in PF:
            for k in range(7):
                a(f"s_mov_b32 s57, {k*16384}")
                a(f"buffer_load_dwordx4 v[36:39], v33, s[48:51], s57 offen")
        if "x" in PF:
            a(f"s_mul_i32 s56, s2, {N*128//P}")
            a("v_lshl_add_u32 v33, v0, 4, s56")
            for k in range(2):
                a(f"s_mov_b32 s57, {k*16384}")
                a(f"buffer_load_dwordx4 v[36:39], v33, s[52:55], s57 offen")
    a("s_mov_b64 exec, s[32:33]")
    a.branch("s_cbranch_execz PREP_A2")
    a("ds_write_b128 v2, v[40:43]")
    a.label("PREP_A2")
    a("s_mov_b64 exec, -1")
    a("s_waitcnt lgkmcnt(0)")
    a("s_barrier")
    a("s_mov_b64 exec, s[30:31]")
    a.branch("s_cbranch_execz PREP_B")
    a(f"s_mov_b32 s34, {MAGIC25}")
    a("v_mov_b32 v3, 1")
    a(f"s_waitcnt vmcnt({(7 if 'e' in PF else 0) + (2 if 'x' in PF else 0)})")
    for i in range(4):
        a(f"v_mul_hi_u32 v{12+i}, v{4+i}, s34")
    for i in range(4):
        a(f"v_mul_u32_u24 v{16+i}, {GN}, v{12+i}")
    for i in range(4):
        a(f"v_sub_u32 v{16+i}, v{4+i}, v{16+i}")
    for i in range(4):
        a(f"v_lshlrev_b32 v{12+i}, 2, v{12+i}")
    for i in range(4):
        a(f"ds_add_rtn_u32 v{20+i}, v{12+i}, v3")
    a(f"s_mul_i32 s35, s2, {C}")
    a("v_lshl_add_u32 v32, v0, 2, s35")
    for i in range(4):
        a(f"v_lshl_or_b32 v{24+2*i}, v{8+i}, 7, v{16+i}")
        a(f"v_lshrrev_b32 v33, 5, v{12+i}")
        a(f"v_lshl_or_b32 v{24+2*i}, v33, 23, v{24+2*i}")
        a(f"v_add_u32 v{25+2*i}, {i}, v32")
        a(f"v_bfe_u32 v33, v{12+i}, 2, 3")
        a(f"v_lshl_or_b32 v{25+2*i}, v{25+2*i}, 5, v33")
    a("s_waitcnt lgkmcnt(0)")
    a.label("PREP_B")
    a("s_mov_b64 exec, -1")
    a("s_barrier")
    a("s_mov_b64 exec, s[32:33]")
    a.branch("s_cbranch_execz PREP_C")
    a("ds_read_b128 v[40:43], v2")
    a("s_waitcnt lgkmcnt(0)")
    a.label("PREP_C")
    a("s_mov_b64 exec, -1")
    a("v_add_u32 v44, v40, v41")
    a("v_add_u32 v45, v44, v42")
    a("v_add_u32 v46, v45, v43")
    a("v_mov_b32 v47, v46")
    wave_scan(a, 47)
    a("v_lshrrev_b32 v48, 6, v0")
    a("v_and_b32 v49, 63, v0")
    a("v_readfirstlane_b32 s36, v48")
    a("v_lshlrev_b32 v50, 2, v48")
    a(f"v_add_u32 v50, {NG*4}, v50")
    a("v_cmp_eq_u32 vcc, 63, v49")
    a("s_and_saveexec_b64 s[38:39], vcc")
    a("ds_write_b32 v50, v47")
    a("s_mov_b64 exec, -1")
    a("s_waitcnt lgkmcnt(0)")
    a("s_barrier")
    a("v_and_b32 v51, 15, v49")
    a("v_lshlrev_b32 v50, 2, v51")
    a(f"v_add_u32 v50, {NG*4}, v50")
    a("ds_read_b32 v52, v50")
    a("v_cmp_gt_u32 vcc, s36, v51")
    a("s_waitcnt lgkmcnt(0)")
    a("v_cndmask_b32 v52, 0, v52, vcc")
    for sh in (1, 2, 4, 8):
        a(f"v_add_u32_dpp v52, v52, v52 row_shr:{sh} row_mask:0xf bank_mask:0xf bound_ctrl:0")
    a("v_readlane_b32 s37, v52, 15")
    a("v_sub_u32 v47, v47, v46")
    a("v_add_u32 v47, s37, v47")
    a("v_mov_b32 v56, v47")
    a("v_add_u32 v57, v47, v40")
    a("v_add_u32 v58, v47, v44")
    a("v_add_u32 v59, v47, v45")
    for i in range(4):
        a(f"v_lshl_or_b32 v{60+i}, v{40+i}, 16, v{56+i}")
    a("v_lshrrev_b32 v53, 1, v0")
    a(f"v_mul_u32_u24 v53, {P*32}, v53")
    a("v_and_b32 v54, 1, v0")
    a("v_lshl_add_u32 v53, v54, 4, v53")
    a("s_lshl_b32 s3, s2, 5")
    a("v_add_u32 v53, s3, v53")
    a("s_mov_b64 exec, s[32:33]")
    a.branch("s_cbranch_execz PREP_D")
    a("ds_write_b128 v2, v[56:59]")
    a("buffer_store_dwordx4 v[60:63], v53, s[20:23], 0 offen")
    a.label("PREP_D")
    a("s_mov_b64 exec, -1")
    a("s_waitcnt lgkmcnt(0)")
    a("s_barrier")
    a("s_mov_b64 exec, s[30:31]")
    a.branch("s_cbranch_execz PREP_E")
    for i in range(4):
        a(f"ds_read_b32 v{12+i}, v{12+i}")
    a("s_waitcnt lgkmcnt(0)")
    for i in range(4):
        a(f"v_add_u32 v{12+i}, v{12+i}, v{20+i}")
        a(f"v_lshlrev_b32 v{12+i}, 3, v{12+i}")
        a(f"ds_write_b64 v{12+i}, v[{24+2*i}:{25+2*i}] offset:{PL_STAGE}")
    a.label("PREP_E")
    a("s_mov_b64 exec, -1")
    a("s_waitcnt lgkmcnt(0)")
    a("s_barrier")
    srd(a, 40, 8, 9, SLOTS_BYTES, WS_SLOTS)
    a("v_lshlrev_b32 v2, 3, v0")
    for k in range(4):
        a(f"ds_read_b64 v[{24+2*k}:{25+2*k}], v2 offset:{PL_STAGE + k*8192}")
    a("s_waitcnt lgkmcnt(0)")
    for k in range(4):
        a(f"v_lshrrev_b32 v{12+k}, 23, v{24+2*k}")
        a(f"v_min_u32 v{12+k}, {NWG-1}, v{12+k}")
        a(f"v_lshlrev_b32 v{16+k}, 5, v{12+k}")
        a(f"ds_read_b32 v{16+k}, v{16+k}")
    a(f"s_mul_i32 s35, s2, {C}")
    a(f"s_lshl_b32 s36, s2, 5")
    a("s_waitcnt lgkmcnt(0)")
    a("s_mov_b64 s[44:45], 0")
    for k in range(4):
        a(f"v_add_u32 v20, {1024*k}, v0")
        a(f"v_sub_u32 v21, v20, v{16+k}")
        a(f"v_mul_u32_u24 v22, {P*SL}, v{12+k}")
        a(f"v_add3_u32 v22, v22, v21, s36")
        a(f"v_lshlrev_b32 v22, 3, v22")
        a(f"v_cmp_gt_u32 vcc, {C}, v20")
        a(f"s_mov_b64 s[46:47], vcc")
        a(f"v_cmp_gt_u32 vcc, {SL}, v21")
        a(f"s_and_b64 exec, vcc, s[46:47]")
        a(f"buffer_store_dwordx2 v[{24+2*k}:{25+2*k}], v22, s[40:43], 0 offen")
        a(f"s_andn2_b64 exec, s[46:47], vcc")
        a.branch(f"s_cbranch_execz PREP_NOVF{k}")
        a(f"v_add_u32 v22, s35, v20")
        a(f"v_lshlrev_b32 v22, 3, v22")
        a(f"buffer_store_dwordx2 v[{24+2*k}:{25+2*k}], v22, s[24:27], 0 offen")
        a.label(f"PREP_NOVF{k}")
        a("s_mov_b64 exec, -1")
    a.branch("s_branch PREP_END")

    a.label("PREP_W")
    a("s_load_dwordx4 s[12:15], s[0:1], 32")
    a("s_load_dwordx4 s[16:19], s[0:1], 48")
    a("s_load_dwordx2 s[20:21], s[0:1], 64")
    a("s_waitcnt lgkmcnt(0)")
    srd(a, 24, 8, 9, 65536)
    srd(a, 28, 12, 13, 8192)
    srd(a, 32, 14, 15, 8192)
    srd(a, 36, 16, 17, 2048)
    srd(a, 40, 18, 19, 8192)
    srd(a, 44, 20, 21, 8192)
    a("v_and_b32 v1, 31, v0")
    a("v_bfe_u32 v2, v0, 5, 1")
    a("v_bfe_u32 v3, v0, 6, 1")
    a("v_bfe_u32 v4, v0, 7, 2")
    a("v_lshlrev_b32 v5, 12, v2")
    a("v_lshl_add_u32 v5, v4, 10, v5")
    a("v_lshl_add_u32 v5, v1, 2, v5")
    a("v_lshl_add_u32 v5, v3, 1, v5")
    a("v_lshlrev_b32 v6, 4, v0")
    a("v_cmp_gt_u32 vcc, 512, v0")
    a("s_and_saveexec_b64 s[48:49], vcc")
    a.branch("s_cbranch_execz PREP_W2")
    mats = ((32, OFF_WB), (44, OFF_WV), (28, OFF_WA), (40, OFF_WU))
    for mi, (sd, off) in enumerate(mats):
        for j in range(8):
            a(f"buffer_load_ushort v{8+8*mi+j}, v5, s[{sd}:{sd+3}], 0 offen offset:{j*128}")
    a("v_mov_b32 v60, 0xbfb8aa3b")
    for mi, (sd, off) in enumerate(mats):
        a(f"s_waitcnt vmcnt({24-8*mi+mi})")
        for j in range(4):
            if FOLD and off == OFF_WB:
                a(f"v_lshlrev_b32 v{8+8*mi+2*j}, 16, v{8+8*mi+2*j}")
                a(f"v_lshlrev_b32 v{9+8*mi+2*j}, 16, v{9+8*mi+2*j}")
                a(f"v_mul_f32 v{8+8*mi+2*j}, v60, v{8+8*mi+2*j}")
                a(f"v_mul_f32 v{9+8*mi+2*j}, v60, v{9+8*mi+2*j}")
                a(f"v_cvt_pk_bf16_f32 v{40+4*mi+j}, v{8+8*mi+2*j}, v{9+8*mi+2*j}")
            else:
                a(f"v_lshl_or_b32 v{40+4*mi+j}, v{9+8*mi+2*j}, 16, v{8+8*mi+2*j}")
        a(f"s_mov_b32 s50, {off}")
        a(f"buffer_store_dwordx4 v[{40+4*mi}:{43+4*mi}], v6, s[24:27], s50 offen")
    a.label("PREP_W2")
    a("s_mov_b64 exec, -1")
    a("v_subrev_u32 v7, 512, v0")
    a("v_cmp_gt_u32 vcc, 128, v7")
    a("s_and_saveexec_b64 s[48:49], vcc")
    a.branch("s_cbranch_execz PREP_END")
    a("v_lshlrev_b32 v5, 10, v2")
    a("v_lshl_add_u32 v5, v1, 2, v5")
    a("v_lshl_add_u32 v5, v3, 1, v5")
    a("v_lshlrev_b32 v6, 4, v7")
    for j in range(8):
        a(f"buffer_load_ushort v{8+j}, v5, s[36:39], 0 offen offset:{j*128}")
    a("s_waitcnt vmcnt(0)")
    a("v_mov_b32 v60, 0xbfb8aa3b")
    for j in range(4):
        if FOLD:
            a(f"v_lshlrev_b32 v{8+2*j}, 16, v{8+2*j}")
            a(f"v_lshlrev_b32 v{9+2*j}, 16, v{9+2*j}")
            a(f"v_mul_f32 v{8+2*j}, v60, v{8+2*j}")
            a(f"v_mul_f32 v{9+2*j}, v60, v{9+2*j}")
            a(f"v_cvt_pk_bf16_f32 v{16+j}, v{8+2*j}, v{9+2*j}")
        else:
            a(f"v_lshl_or_b32 v{16+j}, v{9+2*j}, 16, v{8+2*j}")
    a(f"s_mov_b32 s50, {OFF_WC}")
    a("buffer_store_dwordx4 v[16:19], v6, s[24:27], s50 offen")
    a.label("PREP_END")
    if X2 == "tl":
        a("s_mov_b64 exec, -1")
        a("s_waitcnt vmcnt(0) lgkmcnt(0)")
        a("s_memrealtime s[62:63]")
        a("s_waitcnt lgkmcnt(0)")
        srd(a, 52, 8, 9, 65536, 128 << 20)
        a("v_lshrrev_b32 v1, 6, v0")
        a("s_lshl_b32 s56, s2, 7")
        a("v_lshl_add_u32 v1, v1, 3, s56")
        a("v_mov_b32 v2, s60")
        a("v_mov_b32 v3, s62")
        a("buffer_store_dwordx2 v[2:3], v1, s[52:55], 0 offen")
    a.label("PREP_END2")
    a("s_endpgm")
    return a.text()


NSLOT = QCAP + 128
L_AP = 0
L_REC = 8192
L_DL = L_REC + NSLOT * 8
L_MLO = L_DL + NSLOT * 4
L_MHI = L_MLO + NSLOT * 2
LDSW = L_MHI + NSLOT * 2
assert LDSW % 256 == 0, LDSW
L_DSC = 0
L_LENW = WPW * 1024
L_TJ = L_LENW + 1024
L_WBASE = L_TJ + 256
LDS_TOTAL = L_WBASE + WPW * LDSW
assert LDS_TOTAL <= 163840
INLOOP = [False]


def mfma32(a, d, x, y, c):
    if X2 == "nomfma" and INLOOP[0]:
        return
    a(f"v_mfma_f32_32x32x16_bf16 {vr(d,16)}, {vr(x,4)}, {vr(y,4)}, {c}")


def gen_main():
    a = Asm()
    R = VAlloc(0, 256)
    R.alloc("tid")
    vL = R.alloc("lane")
    vI = R.alloc("i")
    vH = R.alloc("h")
    vH64 = R.alloc("h64")
    vH16 = R.alloc("h16")
    vN4 = R.alloc("n4")
    vSh = R.alloc("sh")
    vRecA = R.alloc("recaddr")
    vDlA = R.alloc("dladdr")
    vMkA = R.alloc("maskaddr")
    vK = R.alloc("K")
    RC = R.alloc("RC", 2, 2)
    vM1 = R.alloc("m10001")
    vB1 = R.alloc("b3f80")
    WB = R.alloc("WB", 32, 4)
    WV = R.alloc("WV", 32, 4)
    WC = R.alloc("WC", 8, 4)
    DEN = R.alloc("DEN", 32, 4)
    NUM = R.alloc("NUM", 32, 4)
    G = R.alloc("G", 16, 4)
    H = R.alloc("H", 16, 4)
    G1 = R.alloc("G1", 16, 4)
    AD = H
    OH = R.alloc("OH", 8, 4)
    GB = R.alloc("GB", 40, 4)
    vMX = R.alloc("maskx")
    vME = R.alloc("maske")
    print("vgprs used:", R.next, file=sys.stderr)

    SX, SEA, SW, SD, SR_, SO, SS = 8, 12, 16, 20, 24, 28, 56
    s_wv, s_G, s_ns, s_T, s_R, s_NS, s_lds, s_tmp, s_Tn, s_mx, s_q, s_lw = 36, 37, 38, 40, 41, 42, 43, 45, 46, 47, 48, 49

    def ps(k):
        if X2 == "pro":
            a(f"s_memtime s[{60+2*k}:{61+2*k}]")
            a("s_waitcnt lgkmcnt(0)")

    a.raw(".globl main_kernel\n.p2align 8\n.type main_kernel,@function\nmain_kernel:")
    a(f"s_cmp_ge_u32 s2, {NWG}")
    a.branch("s_cbranch_scc1 MAIN_END")
    ps(0)
    if X2 == "tl":
        a("s_memrealtime s[60:61]")
    a("s_load_dwordx4 s[4:7], s[0:1], 0")
    a("s_load_dwordx2 s[32:33], s[0:1], 72")
    a("s_load_dwordx2 s[34:35], s[0:1], 88")
    a(f"v_lshrrev_b32 v{vL}, 6, v0")
    a(f"v_readfirstlane_b32 s{s_wv}, v{vL}")
    a(f"v_and_b32 v{vL}, 63, v0")
    a(f"v_and_b32 v{vI}, 31, v0")
    a(f"v_bfe_u32 v{vH}, v0, 5, 1")
    a(f"v_lshlrev_b32 v{vH64}, 6, v{vH}")
    a(f"v_lshlrev_b32 v{vH16}, 4, v{vH}")
    a(f"v_and_b32 v{vSh}, 15, v0")
    a(f"s_lshl_b32 s{s_G}, s2, 3")
    a(f"s_add_u32 s{s_G}, s{s_G}, s{s_wv}")
    a(f"s_mul_i32 s{s_ns}, s{s_G}, {GN}")
    a(f"s_mul_i32 s{s_lds}, s{s_wv}, {LDSW}")
    a(f"s_add_u32 s{s_lds}, s{s_lds}, {L_WBASE}")
    a(f"s_mov_b32 s{s_q}, {QCAP}")
    a(f"s_mov_b32 s{s_lw}, {LDSW}")
    a(f"v_mov_b32 v{vK}, 0xbfb8aa3b")
    a(f"v_mov_b32 v{vM1}, 0x10001")
    a(f"v_mov_b32 v{vB1}, 0x3f80")
    a(f"v_mov_b32 v{vMX}, 0x007fff80")
    a(f"v_mov_b32 v{vME}, 0xffffffe0")
    a(f"v_lshlrev_b32 v{vN4}, 2, v{vI}")
    a(f"v_add_u32 v{vN4}, s{s_lds}, v{vN4}")
    a("s_waitcnt lgkmcnt(0)")
    srd(a, SD, 34, 35, DESC_BYTES, WS_DESC)
    srd(a, SW, 34, 35, OFF_WC + 2048)
    srd(a, SS, 34, 35, SLOTS_BYTES, WS_SLOTS)
    SLT = GB
    vtmp = GB + 32
    vD = G
    WS0 = H
    a(f"s_mul_i32 s{s_tmp}, s2, {P*32}")
    a(f"v_lshl_add_u32 v{vtmp}, v0, 5, s{s_tmp}")
    a(f"v_mov_b32 v{vtmp+3}, {BIG}")
    a(f"v_cmp_gt_u32 vcc, {P}, v0")
    a(f"v_cndmask_b32 v{vtmp}, v{vtmp+3}, v{vtmp}, vcc")
    a(f"buffer_load_dwordx4 {vr(vD,4)}, v{vtmp}, s[{SD}:{SD+3}], 0 offen")
    a(f"buffer_load_dwordx4 {vr(vD+4,4)}, v{vtmp}, s[{SD}:{SD+3}], 0 offen offset:16")
    a(f"v_lshlrev_b32 v{vtmp+2}, 4, v0")
    for k in range(4):
        a(f"s_mov_b32 s{s_tmp}, {k*8192}")
        a(f"buffer_load_dwordx4 {vr(WS0+4*k,4)}, v{vtmp+2}, s[{SW}:{SW+3}], s{s_tmp} offen")

    def slot_addr():
        a(f"v_lshrrev_b32 v{vtmp+2}, 3, v0")
        a(f"v_lshlrev_b32 v{vtmp+2}, 8, v{vtmp+2}")
        a(f"v_and_b32 v{vtmp+3}, 7, v0")
        a(f"v_lshl_add_u32 v{vtmp+2}, v{vtmp+3}, 4, v{vtmp+2}")

    def load_slots():
        slot_addr()
        for k in range(4):
            a(f"s_mul_i32 s{s_tmp}, s2, {P*SL*8}")
            a(f"s_add_u32 s{s_tmp}, s{s_tmp}, {k*16384}")
            a(f"buffer_load_dwordx4 {vr(SLT+4*k,4)}, v{vtmp+2}, s[{SS}:{SS+3}], s{s_tmp} offen")

    srd(a, SX, 4, 5, N * 128)
    srd(a, SEA, 6, 7, E * 32)
    srd(a, SW, 34, 35, 65536)
    srd(a, SR_, 34, 35, RECS_BYTES, WS_RECS)
    srd(a, SO, 32, 33, N * 128)
    for k in range(32):
        a(f"v_mov_b32 v{DEN+k}, 0")
    a("s_waitcnt vmcnt(4)")
    a(f"v_lshlrev_b32 v{vtmp}, 2, v0")
    a(f"v_lshrrev_b32 v{vtmp+4}, 16, v{vD}")
    for j in range(1, 8):
        a(f"v_lshrrev_b32 v{vtmp+5}, 16, v{vD+j}")
        a(f"v_add_u32 v{vtmp+4}, v{vtmp+4}, v{vtmp+5}")
    a(f"v_lshl_or_b32 v{vtmp+4}, v{vD}, 16, v{vtmp+4}")
    a(f"v_cmp_gt_u32 vcc, 256, v0")
    a("s_and_saveexec_b64 s[52:53], vcc")
    a.branch("s_cbranch_execz DSC_SKIP")
    for j in range(WPW):
        a(f"ds_write_b32 v{vtmp}, v{vD+j} offset:{L_DSC + j*1024}")
    a(f"ds_write_b32 v{vtmp}, v{vtmp+4} offset:{L_LENW}")
    a.label("DSC_SKIP")
    a("s_mov_b64 exec, -1")
    a("s_waitcnt vmcnt(0)")
    for k in range(4):
        if k == 3:
            a(f"v_cmp_gt_u32 vcc, 128, v0")
            a("s_and_saveexec_b64 s[52:53], vcc")
            a.branch("s_cbranch_execz WST_SKIP")
        a(f"ds_write_b128 v{vtmp+2}, {vr(WS0+4*k,4)} offset:{L_WBASE + k*LDSW + L_AP if k < 3 else L_WBASE + L_REC}")
    a.label("WST_SKIP")
    a("s_mov_b64 exec, -1")
    a("s_waitcnt lgkmcnt(0)")
    a("s_barrier")
    ps(1)
    load_slots()
    WAt = NUM
    XO = G
    vC = G1
    vS = G1 + 4
    vLw = G1 + 8
    vTot = G1 + 12
    vInc = G1 + 13
    vB = OH
    a(f"s_lshl_b32 s{s_tmp}, s{s_wv}, 10")
    a(f"v_lshl_add_u32 v{vtmp}, v{vL}, 2, s{s_tmp}")
    a(f"v_lshlrev_b32 v{vtmp+1}, 2, v{vL}")
    for k in range(4):
        a(f"ds_read_b32 v{vD+k}, v{vtmp} offset:{L_DSC + k*256}")
    for k in range(4):
        a(f"ds_read_b32 v{vLw+k}, v{vtmp+1} offset:{L_LENW + k*256}")
    a(f"v_lshlrev_b32 v{vtmp+2}, 4, v{vL}")
    for (base, off) in ((WAt, OFF_WA), (WB, OFF_WB), (WV, OFF_WV)):
        for k in range(8):
            a(f"ds_read_b128 {vr(base+4*k,4)}, v{vtmp+2} offset:{L_WBASE + (off//8192)*LDSW + L_AP + k*1024}")
    for c in range(2):
        a(f"ds_read_b128 {vr(WC+4*c,4)}, v{vtmp+2} offset:{L_WBASE + L_REC + c*1024}")
    a("s_waitcnt lgkmcnt(15)")
    for k in range(4):
        a(f"v_lshrrev_b32 v{vC+k}, 16, v{vD+k}")
        a(f"v_and_b32 v{vS+k}, 0xffff, v{vD+k}")
    a(f"v_add_u32 v{vTot}, v{vC}, v{vC+1}")
    a(f"v_add3_u32 v{vTot}, v{vTot}, v{vC+2}, v{vC+3}")
    a(f"v_mov_b32 v{vInc}, v{vTot}")
    wave_scan(a, vInc)
    a(f"v_readlane_b32 s{s_T}, v{vInc}, 63")
    a(f"v_sub_u32 v{vB}, v{vInc}, v{vTot}")
    a(f"v_add_u32 v{vB+1}, v{vB}, v{vC}")
    a(f"v_add_u32 v{vB+2}, v{vB+1}, v{vC+1}")
    a(f"v_add_u32 v{vB+3}, v{vB+2}, v{vC+2}")
    for k in range(4):
        a(f"v_lshrrev_b32 v{vLw+k}, 16, v{vLw+k}")
        a(f"v_sub_u32 v{vB+k}, v{vB+k}, v{vS+k}")
        a(f"v_add_u32 v{vB+k}, v{vB+k}, v{vLw+k}")
        a(f"ds_write_b32 v{vtmp}, v{vB+k} offset:{L_DSC + k*256}")
    a(f"v_mov_b32 v{vTot}, s{s_T}")
    a(f"s_lshl_b32 s{s_tmp}, s{s_wv}, 2")
    a(f"v_mov_b32 v{vInc}, s{s_tmp}")
    a(f"ds_write_b32 v{vInc}, v{vTot} offset:{L_TJ}")
    a("s_waitcnt lgkmcnt(0)")
    a("s_barrier")
    ps(2)
    a(f"v_mov_b32 v{vInc}, 0")
    a(f"ds_read_b128 {vr(G1,4)}, v{vInc} offset:{L_TJ}")
    a(f"ds_read_b128 {vr(G1+4,4)}, v{vInc} offset:{L_TJ+16}")
    a("s_waitcnt lgkmcnt(0)")
    a(f"v_max3_u32 v{G1}, v{G1}, v{G1+1}, v{G1+2}")
    a(f"v_max3_u32 v{G1}, v{G1}, v{G1+3}, v{G1+4}")
    a(f"v_max3_u32 v{G1}, v{G1}, v{G1+5}, v{G1+6}")
    a(f"v_max_u32 v{G1}, v{G1}, v{G1+7}")
    a(f"v_readfirstlane_b32 s{s_mx}, v{G1}")
    a(f"s_mov_b32 s{s_R}, 0")

    a.label("ROUND")
    a(f"s_sub_u32 s{s_Tn}, s{s_T}, s{s_R}")
    a(f"s_cselect_b32 s{s_Tn}, 0, s{s_Tn}")
    a(f"s_min_u32 s{s_Tn}, s{s_Tn}, {QCAP}")
    vt = H
    vi, vad, vval, vdum = vt, vt + 1, vt + 2, vt + 4
    a(f"v_mov_b32 v{vdum}, 0x007fff80")
    a(f"v_mov_b32 v{vdum+1}, {BIG}")
    a(f"v_add_u32 v{vi}, s{s_Tn}, v{vL}")
    a(f"v_lshl_add_u32 v{vad}, v{vi}, 3, s{s_lds}")
    a(f"ds_write_b64 v{vad}, {vr(vdum,2)} offset:{L_REC}")
    a(f"ds_write_b64 v{vad}, {vr(vdum,2)} offset:{L_REC+512}")
    a(f"v_lshl_add_u32 v{vad}, v{vi}, 2, s{s_lds}")
    a(f"v_mov_b32 v{vval}, {31*256}")
    a(f"ds_write_b32 v{vad}, v{vval} offset:{L_DL}")
    a(f"ds_write_b32 v{vad}, v{vval} offset:{L_DL+256}")
    a(f"v_lshl_add_u32 v{vad}, v{vi}, 1, s{s_lds}")
    a(f"v_mov_b32 v{vval}, 0")
    a(f"ds_write_b16 v{vad}, v{vval} offset:{L_MLO}")
    a(f"ds_write_b16 v{vad}, v{vval} offset:{L_MLO+128}")
    a(f"ds_write_b16 v{vad}, v{vval} offset:{L_MHI}")
    a(f"ds_write_b16 v{vad}, v{vval} offset:{L_MHI+128}")
    vT4 = vt + 6
    vS0 = vt + 7
    vSR0 = vt + 8
    vLen = G1
    vDl = OH
    vj, vpos, vwb, va = vt + 9, vt + 10, vt + 11, vt + 15
    vLDSW = vt + 3
    vS1 = RC
    vSR1 = RC + 1
    a(f"v_lshrrev_b32 v{vT4}, 3, v0")
    a(f"v_lshlrev_b32 v{vT4}, 2, v{vT4}")
    a(f"v_and_b32 v{vS0}, 7, v0")
    a(f"v_lshlrev_b32 v{vS0}, 1, v{vS0}")
    for k in range(4):
        a(f"ds_read_b32 v{vLen+k}, v{vT4} offset:{L_LENW + k*256}")
    a(f"v_mov_b32 v{vLDSW}, {LDSW}")
    slot_addr()
    a(f"v_mov_b32 v{vtmp+3}, {BIG}")
    a(f"v_add_u32 v{vS1}, 16, v{vS0}")
    a("s_waitcnt lgkmcnt(0)")
    for k in range(4):
        a(f"v_and_b32 v{vLen+k}, 0xffff, v{vLen+k}")
    for k in range(4):
        a(f"v_cmp_lt_u32 vcc, v{vS1}, v{vLen+k}")
        a(f"v_cndmask_b32 v{vtmp+4+k}, v{vtmp+3}, v{vtmp+2}, vcc")
        a(f"s_mul_i32 s{s_tmp}, s2, {P*SL*8}")
        a(f"s_add_u32 s{s_tmp}, s{s_tmp}, {k*16384 + 128}")
        a(f"buffer_load_dwordx4 {vr(SLT+16+4*k,4)}, v{vtmp+4+k}, s[{SS}:{SS+3}], s{s_tmp} offen")

    def scatter(w0, w1, vdelta, vsr, valid_cmp):
        a(f"v_add_u32 v{vpos}, v{vdelta}, v{vsr}")
        a(f"v_and_b32 v{vj}, 7, v{w1}")
        a(f"v_mul_u32_u24 v{vwb}, v{vj}, v{vLDSW}")
        valid_cmp()
        a(f"v_cmp_gt_u32 s[52:53], s{s_q}, v{vpos}")
        a(f"v_lshl_add_u32 v{va}, v{vpos}, 3, v{vwb}")
        a(f"s_and_b64 exec, vcc, s[52:53]")
        a(f"ds_write_b64 v{va}, v[{w0}:{w1}] offset:{L_WBASE + L_REC}")
        a("s_mov_b64 exec, -1")

    for lvl in range(2):
        a(f"s_waitcnt vmcnt(4)")
        if lvl == 1:
            a(f"s_cmp_eq_u32 s{s_R}, 0")
            a.branch("s_cbranch_scc1 L2_OK")
            a("s_waitcnt vmcnt(0)")
            a.label("L2_OK")
        if lvl == 0:
            ps(3)
        a(f"v_add_u32 v{vS1}, 1, v{vS0}")
        a(f"v_subrev_u32 v{vSR0}, s{s_R}, v{vS0}")
        a(f"v_add_u32 v{vSR1}, 1, v{vSR0}")
        for k in range(4):
            for e in range(2):
                w1 = SLT + 16 * lvl + 4 * k + 2 * e + 1
                a(f"v_and_b32 v{vj}, 7, v{w1}")
                a(f"v_lshl_add_u32 v{va}, v{vj}, 10, v{vT4}")
                a(f"ds_read_b32 v{vDl+2*k+e}, v{va} offset:{L_DSC + k*256}")
        a("s_waitcnt lgkmcnt(0)")
        for k in range(4):
            for e in range(2):
                w0 = SLT + 16 * lvl + 4 * k + 2 * e
                scatter(w0, w0 + 1, vDl + 2 * k + e, vSR0 if e == 0 else vSR1,
                        lambda k=k, e=e: a(f"v_cmp_lt_u32 vcc, v{vS0 if e == 0 else vS1}, v{vLen+k}"))
        if lvl == 0:
            a(f"v_add_u32 v{vS0}, 16, v{vS0}")
            XO = GB
            a(f"s_cmp_lg_u32 s{s_R}, 0")
            a.branch("s_cbranch_scc1 XO_SKIP")
            a(f"v_add_u32 v{va}, s{s_ns}, v{vI}")
            a(f"v_lshl_add_u32 v{va}, v{va}, 7, v{vH64}")
            for s in range(4):
                a(f"buffer_load_dwordx4 {vr(XO+4*s,4)}, v{va}, s[{SX}:{SX+3}], 0 offen offset:{16*s}")
            a.label("XO_SKIP")
    vo_len, vo_s, vo_base = G1, G1 + 1, G1 + 2
    vo_rec = G1 + 4
    vo_d, vo_sr = G1 + 6, G1 + 7
    a(f"v_lshlrev_b32 v{vad}, 2, v0")
    a(f"v_and_b32 v{vad}, 0x3ff, v{vad}")
    a(f"ds_read_b32 v{vo_len}, v{vad} offset:{L_LENW}")
    a("s_waitcnt lgkmcnt(0)")
    a(f"v_lshrrev_b32 v{vo_base}, 16, v{vo_len}")
    a(f"v_and_b32 v{vo_len}, 0xffff, v{vo_len}")
    a(f"v_cmp_gt_u32 vcc, 256, v0")
    a(f"v_cndmask_b32 v{vo_len}, 0, v{vo_len}, vcc")
    a(f"v_mul_u32_u24 v{vo_s}, {C}, v0")
    a(f"v_add_u32 v{vo_base}, v{vo_base}, v{vo_s}")
    a(f"v_mov_b32 v{vo_s}, {SL}")
    a.label("OVF")
    a(f"v_cmp_lt_u32 vcc, v{vo_s}, v{vo_len}")
    a("s_nop 1")
    a("s_cbranch_vccz OVF_DONE")
    a(f"v_add_u32 v{vo_d}, v{vo_base}, v{vo_s}")
    a(f"v_lshlrev_b32 v{vo_d}, 3, v{vo_d}")
    a(f"v_mov_b32 v{vo_sr}, {BIG}")
    a(f"v_cndmask_b32 v{vo_d}, v{vo_sr}, v{vo_d}, vcc")
    a(f"buffer_load_dwordx2 {vr(vo_rec,2)}, v{vo_d}, s[{SR_}:{SR_+3}], 0 offen")
    a("s_waitcnt vmcnt(0)")
    a(f"v_and_b32 v{vj}, 7, v{vo_rec+1}")
    a(f"v_lshl_add_u32 v{va}, v{vj}, 10, v{vad}")
    a(f"ds_read_b32 v{vo_d}, v{va} offset:{L_DSC}")
    a(f"v_subrev_u32 v{vo_sr}, s{s_R}, v{vo_s}")
    a("s_waitcnt lgkmcnt(0)")
    scatter(vo_rec, vo_rec + 1, vo_d, vo_sr, lambda: a(f"v_cmp_lt_u32 vcc, v{vo_s}, v{vo_len}"))
    a(f"v_add_u32 v{vo_s}, 1, v{vo_s}")
    a.branch("s_branch OVF")
    a.label("OVF_DONE")
    ps(4)
    a("s_waitcnt lgkmcnt(0)")
    a("s_barrier")
    ps(5)
    NM = QCAP // 64
    a(f"v_lshl_add_u32 v{RC}, v{vL}, 3, s{s_lds}")
    for m in range(NM):
        a(f"ds_read_b32 v{G+m}, v{RC} offset:{L_REC + m*512}")
    a(f"v_lshl_add_u32 v{G1}, v{vL}, 2, s{s_lds}")
    a(f"v_lshl_add_u32 v{G1+1}, v{vL}, 1, s{s_lds}")
    a("s_waitcnt lgkmcnt(0)")
    for m in range(NM):
        a(f"v_add_u32 v{G1+2}, {64*m}, v{vL}")
        a(f"v_cmp_gt_u32 vcc, s{s_Tn}, v{G1+2}")
        a(f"s_and_b64 exec, exec, vcc")
        a.branch(f"s_cbranch_execz DRV_DONE")
        a(f"v_and_b32 v{G+m}, 31, v{G+m}")
        a(f"v_lshlrev_b32 v{G1+3}, v{G+m}, 1")
        a(f"v_lshrrev_b32 v{G1+4}, 16, v{G1+3}")
        a(f"v_lshlrev_b32 v{G+m}, 8, v{G+m}")
        a(f"ds_write_b32 v{G1}, v{G+m} offset:{L_DL + m*256}")
        a(f"ds_write_b16 v{G1+1}, v{G1+3} offset:{L_MLO + m*128}")
        a(f"ds_write_b16 v{G1+1}, v{G1+4} offset:{L_MHI + m*128}")
    a.label("DRV_DONE")
    a("s_mov_b64 exec, -1")
    ps(6)
    a(f"s_add_u32 s{s_NS}, s{s_Tn}, 31")
    a(f"s_lshr_b32 s{s_NS}, s{s_NS}, 5")
    a(f"v_lshl_add_u32 v{vRecA}, v{vI}, 3, s{s_lds}")
    a(f"v_lshl_add_u32 v{vDlA}, v{vH}, 4, s{s_lds}")
    a(f"v_bfe_u32 v{RC}, v{vI}, 4, 1")
    a(f"v_mul_u32_u24 v{RC}, {L_MHI-L_MLO}, v{RC}")
    a(f"v_lshl_add_u32 v{vMkA}, v{vH}, 3, s{s_lds}")
    a(f"v_add_u32 v{vMkA}, v{vMkA}, v{RC}")

    def gathers(b):
        base = GB + 20 * b
        a(f"v_and_or_b32 v{RC}, v{RC}, v{vMX}, v{vH64}")
        a(f"v_and_or_b32 v{RC+1}, v{RC+1}, v{vME}, v{vH16}")
        for s in range(4):
            a(f"buffer_load_dwordx4 {vr(base+4*s,4)}, v{RC}, s[{SX}:{SX+3}], 0 offen offset:{16*s}")
        a(f"buffer_load_dwordx4 {vr(base+16,4)}, v{RC+1}, s[{SEA}:{SEA+3}], 0 offen")

    a(f"ds_read_b64 {vr(RC,2)}, v{vRecA} offset:{L_REC}")
    a("s_waitcnt lgkmcnt(0)")
    gathers(1)
    a(f"s_cmp_lg_u32 s{s_R}, 0")
    a.branch("s_cbranch_scc1 AP_DONE")
    a("s_waitcnt vmcnt(5)")
    a(f"v_lshl_add_u32 v{RC}, v{vH}, 10, v{vN4}")
    for c in range(2):
        d = H if c == 0 else G1
        for s in range(4):
            mfma32(a, d, XO + 4 * s, WAt + 4 * (2 * s + c), "0" if s == 0 else vr(d, 16))
    for c in range(2):
        d = H if c == 0 else G1
        for r in range(16):
            row = 8 * (r >> 2) + (r & 3)
            if FOLD:
                a(f"v_mul_f32 v{d+r}, v{vK}, v{d+r}")
            a(f"ds_write_b32 v{RC}, v{d+r} offset:{L_AP + row*256 + c*128}")
    for k in range(32):
        a(f"v_mov_b32 v{NUM+k}, 0")
    a.label("AP_DONE")
    ps(7)
    a(f"s_cmp_eq_u32 s{s_NS}, 0")
    a.branch("s_cbranch_scc1 LOOP_DONE")
    if EXP == "noloop":
        a.branch("s_branch EPILOGUE")
    if EXP in ("nogather", "noea"):
        a(f"s_mov_b32 s{SEA+2}, 0")
    if EXP in ("nogather", "nox"):
        a(f"s_mov_b32 s{SX+2}, 0")

    def merge(valu, mf, first_gap=0):
        n, m = len(valu), len(mf)
        pos = [first_gap + (k * (n - first_gap)) // max(m, 1) for k in range(m)]
        k = 0
        for idx, ins in enumerate(valu):
            while k < m and pos[k] <= idx:
                mf[k]()
                k += 1
            a(ins)
        while k < m:
            mf[k]()
            k += 1

    def valu_g(g):
        L = []
        for r in range(16):
            if not FOLD:
                L.append(f"v_mul_f32 v{g+r}, v{vK}, v{g+r}")
        for r in range(16):
            L.append(f"v_exp_f32 v{g+r}, v{g+r}")
        for r in range(16):
            L.append(f"v_add_f32 v{g+r}, 1.0, v{g+r}")
        for r in range(16):
            L.append(f"v_rcp_f32 v{g+r}, v{g+r}")
        return L

    def pc(g):
        for r in range(16):
            a(f"v_mul_f32 v{H+r}, v{H+r}, v{g+r}")
        for j in range(8):
            a(f"v_cvt_pk_bf16_f32 v{g+j}, v{g+2*j}, v{g+2*j+1}")
        for j in range(8):
            a(f"v_cvt_pk_bf16_f32 v{H+j}, v{H+2*j}, v{H+2*j+1}")

    def gchain(b, c, g):
        base = GB + 20 * b
        L = [(lambda s=s: mfma32(a, g, base + 4 * s, WB + 4 * (2 * s + c), vr(g, 16))) for s in range(4)]
        L.append(lambda: mfma32(a, g, base + 16, WC + 4 * c, vr(g, 16)))
        return L

    def hchain(b, c):
        base = GB + 20 * b
        return [(lambda s=s: mfma32(a, H, base + 4 * s, WV + 4 * (2 * s + c), "0" if s == 0 else vr(H, 16))) for s in range(4)]

    def rchain(c, g):
        L = []
        for s in range(2):
            L.append(lambda s=s: mfma32(a, DEN + 16 * c, OH + 4 * s, g + 4 * s, vr(DEN + 16 * c, 16)))
            L.append(lambda s=s: mfma32(a, NUM + 16 * c, OH + 4 * s, H + 4 * s, vr(NUM + 16 * c, 16)))
        return L

    def step(b):
        a(f"ds_read_b64 {vr(RC,2)}, v{vRecA} offset:{L_REC + 256}")
        for q in range(4):
            a(f"ds_read_b128 {vr(AD+4*q,4)}, v{vDlA} offset:{L_DL + q*32}")
        for q in range(4):
            a(f"ds_read_b64 {vr(OH+2*q,2)}, v{vMkA} offset:{L_MLO + q*16}")
        a("s_waitcnt lgkmcnt(8)")
        gathers(1 - b)
        a("s_waitcnt lgkmcnt(4)")
        for k in range(16):
            a(f"v_add_u32 v{AD+k}, v{AD+k}, v{vN4}")
        for r in range(16):
            a(f"ds_read_b32 v{G+r}, v{AD+r} offset:{L_AP}")
        for r in range(16):
            a(f"ds_read_b32 v{G1+r}, v{AD+r} offset:{L_AP + 128}")
        a("s_waitcnt vmcnt(5) lgkmcnt(15)")
        ohl = []
        for k in range(8):
            ohl.append(f"v_lshrrev_b32 v{OH+k}, v{vSh}, v{OH+k}")
        for k in range(8):
            ohl.append(f"v_and_b32 v{OH+k}, v{vM1}, v{OH+k}")
        for k in range(8):
            ohl.append(f"v_mul_u32_u24 v{OH+k}, v{vB1}, v{OH+k}")
        ohl.append(f"v_add_u32 v{vRecA}, 256, v{vRecA}")
        ohl.append(f"v_add_u32 v{vDlA}, 128, v{vDlA}")
        ohl.append(f"v_add_u32 v{vMkA}, 64, v{vMkA}")
        merge(ohl, gchain(b, 0, G))
        a("s_waitcnt lgkmcnt(0)")
        merge(valu_g(G), hchain(b, 0) + gchain(b, 1, G1))
        pc(G)
        merge(valu_g(G1), rchain(0, G) + hchain(b, 1))
        pc(G1)
        for f in rchain(1, G1):
            f()

    a.label("LOOP")
    INLOOP[0] = True
    for b in (1, 0):
        step(b)
        a(f"s_sub_u32 s{s_NS}, s{s_NS}, 1")
        a(f"s_cmp_eq_u32 s{s_NS}, 0")
        if b == 1:
            a.branch("s_cbranch_scc1 LOOP_DONE")
        else:
            a.branch("s_cbranch_scc0 LOOP")
    a.label("LOOP_DONE")
    INLOOP[0] = False
    a("s_waitcnt vmcnt(0) lgkmcnt(0)")
    a(f"s_add_u32 s{s_R}, s{s_R}, {QCAP}")
    a(f"s_cmp_ge_u32 s{s_R}, s{s_mx}")
    a.branch("s_cbranch_scc1 EPILOGUE")
    a("s_barrier")
    load_slots()
    a("s_waitcnt vmcnt(0)")
    a.branch("s_branch ROUND")

    a.label("EPILOGUE")
    a("s_waitcnt vmcnt(0) lgkmcnt(0)")
    if EXP in ("nogather", "nox"):
        a(f"s_mov_b32 s{SX+2}, {N*128}")
    WUt = WB
    XD = WV
    VO = WV + 16
    XO = GB
    a(f"v_lshlrev_b32 v{vtmp+2}, 4, v{vL}")
    for k in range(8):
        if k % 4 == 0:
            a(f"s_mov_b32 s{s_tmp}, {OFF_WU + k*1024}")
        a(f"buffer_load_dwordx4 {vr(WUt+4*k,4)}, v{vtmp+2}, s[{SW}:{SW+3}], s{s_tmp} offen offset:{(k%4)*1024}")
    a(f"v_add_u32 v{vtmp+1}, s{s_ns}, v{vI}")
    a(f"v_lshl_add_u32 v{vtmp+1}, v{vtmp+1}, 7, v{vH64}")
    for s in range(4):
        a(f"buffer_load_dwordx4 {vr(XO+4*s,4)}, v{vtmp+1}, s[{SX}:{SX+3}], 0 offen offset:{16*s}")
    a(f"v_lshl_add_u32 v{vtmp}, v{vH}, 2, s{s_ns}")
    a(f"v_lshlrev_b32 v{vtmp}, 7, v{vtmp}")
    a(f"v_lshl_add_u32 v{vtmp}, v{vI}, 2, v{vtmp}")
    for r in range(16):
        row = 8 * (r >> 2) + (r & 3)
        a(f"buffer_load_dword v{XD+r}, v{vtmp}, s[{SX}:{SX+3}], 0 offen offset:{row*128}")
    a(f"v_mov_b32 v{vtmp+3}, {BIG}")
    a(f"v_lshlrev_b32 v{vtmp+1}, 2, v{vH}")
    for r in range(16):
        row = 8 * (r >> 2) + (r & 3)
        a(f"v_cmp_gt_u32 vcc, {GN-row if GN-row>0 else 0}, v{vtmp+1}")
        a(f"v_add_u32 v{VO+r}, {row*128}, v{vtmp}")
        a(f"v_cndmask_b32 v{VO+r}, v{vtmp+3}, v{VO+r}, vcc")
    a(f"v_mov_b32 v{vtmp+3}, 0x358637bd")
    for k in range(32):
        a(f"v_add_f32 v{DEN+k}, v{vtmp+3}, v{DEN+k}")
    for k in range(32):
        a(f"v_rcp_f32 v{DEN+k}, v{DEN+k}")
    a("s_waitcnt vmcnt(16)")
    for c in range(2):
        d = G if c == 0 else H
        for s in range(4):
            mfma32(a, d, XO + 4 * s, WUt + 4 * (2 * s + c), "0" if s == 0 else vr(d, 16))
    for c in range(2):
        d = G if c == 0 else H
        for r in range(16):
            a(f"v_fma_f32 v{d+r}, v{NUM+16*c+r}, v{DEN+16*c+r}, v{d+r}")
        for r in range(16):
            a(f"v_max_f32 v{d+r}, 0, v{d+r}")
    a("s_waitcnt vmcnt(0)")
    for r in range(16):
        a(f"v_lshlrev_b32 v{G1}, 16, v{XD+r}")
        a(f"v_and_b32 v{G1+1}, 0xffff0000, v{XD+r}")
        a(f"v_add_f32 v{G1}, v{G1}, v{G+r}")
        a(f"v_add_f32 v{G1+1}, v{G1+1}, v{H+r}")
        a(f"v_cvt_pk_bf16_f32 v{XD+r}, v{G1}, v{G1+1}")
        a(f"buffer_store_dword v{XD+r}, v{VO+r}, s[{SO}:{SO+3}], 0 offen")
    if X2 == "tl":
        a("s_waitcnt vmcnt(0) lgkmcnt(0)")
        a("s_memrealtime s[62:63]")
        a("s_waitcnt lgkmcnt(0)")
        srd(a, 52, 34, 35, 65536, (128 << 20) + 65536)
        a(f"s_lshl_b32 s{s_tmp}, s{s_G}, 3")
        a(f"v_mov_b32 v1, s{s_tmp}")
        a("v_mov_b32 v2, s60")
        a("v_mov_b32 v3, s62")
        a("buffer_store_dwordx2 v[2:3], v1, s[52:55], 0 offen")
    if X2 == "pro":
        a(f"s_lshr_b32 s84, s{s_G}, 3")
        a(f"s_cmp_lg_u32 s84, 37")
        a.branch("s_cbranch_scc1 MAIN_END")
        a("s_load_dwordx2 s[80:81], s[0:1], 80")
        a("s_waitcnt lgkmcnt(0)")
        a("s_mov_b32 s82, 256")
        a("s_mov_b32 s83, 0x00020000")
        a(f"s_lshl_b32 s85, s{s_wv}, 5")
        for k in range(7):
            a(f"s_sub_u32 s84, s{62+2*k}, s60")
            a(f"v_mov_b32 v{RC}, s84")
            a(f"v_mov_b32 v{RC+1}, {4*k}")
            a(f"buffer_store_dword v{RC}, v{RC+1}, s[80:83], s85 offen")
        a("s_waitcnt vmcnt(0)")
    a.label("MAIN_END")
    a("s_endpgm")
    return a.text()


def kd(name, vgpr, sgpr):
    acc = (vgpr + 3) // 4 * 4
    return f""".amdhsa_kernel {name}
  .amdhsa_next_free_vgpr {vgpr}
  .amdhsa_next_free_sgpr {sgpr}
  .amdhsa_accum_offset {acc}
  .amdhsa_group_segment_fixed_size 0
  .amdhsa_kernarg_size 96
  .amdhsa_user_sgpr_count 2
  .amdhsa_user_sgpr_kernarg_segment_ptr 1
  .amdhsa_system_sgpr_workgroup_id_x 1
.end_amdhsa_kernel
"""


def main():
    out = HEADER
    out += f"; @launch kernel=prep_kernel grid=({P+1},1,1) block=(1024,1,1) lds={PREP_LDS}\n"
    out += f"; @launch kernel=main_kernel grid=({NWG},1,1) block=({64*WPW},1,1) lds={LDS_TOTAL}\n"
    out += '.amdgcn_target "amdgcn-amd-amdhsa--gfx950"\n.text\n'
    out += gen_prep()
    out += gen_main()
    out += '.section .rodata,"a"\n.p2align 6\n'
    out += kd("prep_kernel", 64, 64)
    out += ".p2align 6\n"
    out += kd("main_kernel", 256, 96)
    path = sys.argv[1] if len(sys.argv) > 1 else "gather_scatter__edge_featured_mpnn_gatedgcn__graph.s"
    open(path, "w").write(out)


if __name__ == "__main__":
    main()
```

```python
import sys, os
from emit import Asm, VAlloc, vr, sr

N = 50000
E = 800000
P = 250
C = 3200
NG = 2000
GN = 25
WPW = 8
NWG = NG // WPW
QCAP = 512

OFF_WB, OFF_WV, OFF_WA, OFF_WC, OFF_WU = 0, 8192, 16384, 24576, 32768
WS_DESC = 65536
DESC_BYTES = P * NG * 4
WS_RECS = 4194304
RECS_BYTES = E * 8
SL = 32
WS_SLOTS = 16 << 20
SLOTS_BYTES = NWG * P * SL * 8
MAGIC25 = 171798692
BIG = 0x40000000
EXP = os.environ.get("EXP", "")
FOLD = os.environ.get("FOLD", "1") == "1"
X2 = os.environ.get("X2", "")

HEADER = open("gather_scatter__edge_featured_mpnn_gatedgcn__graph.s.ref").read().split("; @launch")[0]


def srd(a, d, lo, hi, nbytes, add=0):
    if add:
        a(f"s_add_u32 s{d}, s{lo}, {add}")
        a(f"s_addc_u32 s{d+1}, s{hi}, 0")
    else:
        a(f"s_mov_b32 s{d}, s{lo}")
        a(f"s_mov_b32 s{d+1}, s{hi}")
    a(f"s_and_b32 s{d+1}, s{d+1}, 0xffff")
    a(f"s_mov_b32 s{d+2}, {nbytes}")
    a(f"s_mov_b32 s{d+3}, 0x00020000")


def wave_scan(a, v):
    for sh in (1, 2, 4, 8):
        a(f"v_add_u32_dpp v{v}, v{v}, v{v} row_shr:{sh} row_mask:0xf bank_mask:0xf bound_ctrl:0")
    a(f"v_add_u32_dpp v{v}, v{v}, v{v} row_bcast:15 row_mask:0xa bank_mask:0xf")
    a(f"v_add_u32_dpp v{v}, v{v}, v{v} row_bcast:31 row_mask:0xc bank_mask:0xf")


PL_STAGE = NG * 4 + 64
PREP_LDS = PL_STAGE + 4096 * 8


def gen_prep():
    a = Asm()
    a.raw(".globl prep_kernel\n.p2align 8\n.type prep_kernel,@function\nprep_kernel:")
    a(f"s_cmp_gt_u32 s2, {P}")
    a.branch("s_cbranch_scc1 PREP_END2")
    if X2 == "tl":
        a("s_memrealtime s[60:61]")
    a("s_load_dwordx4 s[4:7], s[0:1], 16")
    a("s_load_dwordx2 s[8:9], s[0:1], 88")
    a(f"s_cmp_eq_u32 s2, {P}")
    a.branch("s_cbranch_scc1 PREP_W")
    a("s_waitcnt lgkmcnt(0)")
    srd(a, 12, 6, 7, E * 4)
    srd(a, 16, 4, 5, E * 4)
    srd(a, 20, 8, 9, DESC_BYTES, WS_DESC)
    srd(a, 24, 8, 9, RECS_BYTES, WS_RECS)
    a(f"s_mul_i32 s3, s2, {C*4}")
    a("v_lshl_add_u32 v1, v0, 4, s3")
    a(f"v_cmp_gt_u32 vcc, {C//4}, v0")
    a("s_mov_b64 s[30:31], vcc")
    a(f"v_cmp_gt_u32 vcc, {NG//4}, v0")
    a("s_mov_b64 s[32:33], vcc")
    for k in range(4):
        a(f"v_mov_b32 v{40+k}, 0")
    a("v_lshlrev_b32 v2, 4, v0")
    a("s_mov_b64 exec, s[30:31]")
    a.branch("s_cbranch_execz PREP_A")
    a("buffer_load_dwordx4 v[4:7], v1, s[12:15], 0 offen")
    a("buffer_load_dwordx4 v[8:11], v1, s[16:19], 0 offen")
    a.label("PREP_A")
    PF = os.environ.get("PF", "")
    if PF:
        a("s_mov_b64 exec, -1")
        a("s_load_dwordx4 s[44:47], s[0:1], 0")
        a("s_waitcnt lgkmcnt(0)")
        srd(a, 48, 46, 47, E * 32)
        srd(a, 52, 44, 45, N * 128)
        a(f"s_mul_i32 s56, s2, {C*32}")
        a("v_lshl_add_u32 v33, v0, 4, s56")
        if "e" in PF:
            for k in range(7):
                a(f"s_mov_b32 s57, {k*16384}")
                a(f"buffer_load_dwordx4 v[36:39], v33, s[48:51], s57 offen")
        if "x" in PF:
            a(f"s_mul_i32 s56, s2, {N*128//P}")
            a("v_lshl_add_u32 v33, v0, 4, s56")
            for k in range(2):
                a(f"s_mov_b32 s57, {k*16384}")
                a(f"buffer_load_dwordx4 v[36:39], v33, s[52:55], s57 offen")
    a("s_mov_b64 exec, s[32:33]")
    a.branch("s_cbranch_execz PREP_A2")
    a("ds_write_b128 v2, v[40:43]")
    a.label("PREP_A2")
    a("s_mov_b64 exec, -1")
    a("s_waitcnt lgkmcnt(0)")
    a("s_barrier")
    a("s_mov_b64 exec, s[30:31]")
    a.branch("s_cbranch_execz PREP_B")
    a(f"s_mov_b32 s34, {MAGIC25}")
    a("v_mov_b32 v3, 1")
    a(f"s_waitcnt vmcnt({(7 if 'e' in PF else 0) + (2 if 'x' in PF else 0)})")
    for i in range(4):
        a(f"v_mul_hi_u32 v{12+i}, v{4+i}, s34")
    for i in range(4):
        a(f"v_mul_u32_u24 v{16+i}, {GN}, v{12+i}")
    for i in range(4):
        a(f"v_sub_u32 v{16+i}, v{4+i}, v{16+i}")
    for i in range(4):
        a(f"v_lshlrev_b32 v{12+i}, 2, v{12+i}")
    for i in range(4):
        a(f"ds_add_rtn_u32 v{20+i}, v{12+i}, v3")
    a(f"s_mul_i32 s35, s2, {C}")
    a("v_lshl_add_u32 v32, v0, 2, s35")
    for i in range(4):
        a(f"v_lshl_or_b32 v{24+2*i}, v{8+i}, 7, v{16+i}")
        a(f"v_lshrrev_b32 v33, 5, v{12+i}")
        a(f"v_lshl_or_b32 v{24+2*i}, v33, 23, v{24+2*i}")
        a(f"v_add_u32 v{25+2*i}, {i}, v32")
        a(f"v_bfe_u32 v33, v{12+i}, 2, 3")
        a(f"v_lshl_or_b32 v{25+2*i}, v{25+2*i}, 5, v33")
    a("s_waitcnt lgkmcnt(0)")
    a.label("PREP_B")
    a("s_mov_b64 exec, -1")
    a("s_barrier")
    a("s_mov_b64 exec, s[32:33]")
    a.branch("s_cbranch_execz PREP_C")
    a("ds_read_b128 v[40:43], v2")
    a("s_waitcnt lgkmcnt(0)")
    a.label("PREP_C")
    a("s_mov_b64 exec, -1")
    a("v_add_u32 v44, v40, v41")
    a("v_add_u32 v45, v44, v42")
    a("v_add_u32 v46, v45, v43")
    a("v_mov_b32 v47, v46")
    wave_scan(a, 47)
    a("v_lshrrev_b32 v48, 6, v0")
    a("v_and_b32 v49, 63, v0")
    a("v_readfirstlane_b32 s36, v48")
    a("v_lshlrev_b32 v50, 2, v48")
    a(f"v_add_u32 v50, {NG*4}, v50")
    a("v_cmp_eq_u32 vcc, 63, v49")
    a("s_and_saveexec_b64 s[38:39], vcc")
    a("ds_write_b32 v50, v47")
    a("s_mov_b64 exec, -1")
    a("s_waitcnt lgkmcnt(0)")
    a("s_barrier")
    a("v_and_b32 v51, 15, v49")
    a("v_lshlrev_b32 v50, 2, v51")
    a(f"v_add_u32 v50, {NG*4}, v50")
    a("ds_read_b32 v52, v50")
    a("v_cmp_gt_u32 vcc, s36, v51")
    a("s_waitcnt lgkmcnt(0)")
    a("v_cndmask_b32 v52, 0, v52, vcc")
    for sh in (1, 2, 4, 8):
        a(f"v_add_u32_dpp v52, v52, v52 row_shr:{sh} row_mask:0xf bank_mask:0xf bound_ctrl:0")
    a("v_readlane_b32 s37, v52, 15")
    a("v_sub_u32 v47, v47, v46")
    a("v_add_u32 v47, s37, v47")
    a("v_mov_b32 v56, v47")
    a("v_add_u32 v57, v47, v40")
    a("v_add_u32 v58, v47, v44")
    a("v_add_u32 v59, v47, v45")
    for i in range(4):
        a(f"v_lshl_or_b32 v{60+i}, v{40+i}, 16, v{56+i}")
    a("v_lshrrev_b32 v53, 1, v0")
    a(f"v_mul_u32_u24 v53, {P*32}, v53")
    a("v_and_b32 v54, 1, v0")
    a("v_lshl_add_u32 v53, v54, 4, v53")
    a("s_lshl_b32 s3, s2, 5")
    a("v_add_u32 v53, s3, v53")
    a("s_mov_b64 exec, s[32:33]")
    a.branch("s_cbranch_execz PREP_D")
    a("ds_write_b128 v2, v[56:59]")
    a("buffer_store_dwordx4 v[60:63], v53, s[20:23], 0 offen")
    a.label("PREP_D")
    a("s_mov_b64 exec, -1")
    a("s_waitcnt lgkmcnt(0)")
    a("s_barrier")
    a("s_mov_b64 exec, s[30:31]")
    a.branch("s_cbranch_execz PREP_E")
    for i in range(4):
        a(f"ds_read_b32 v{12+i}, v{12+i}")
    a("s_waitcnt lgkmcnt(0)")
    for i in range(4):
        a(f"v_add_u32 v{12+i}, v{12+i}, v{20+i}")
        a(f"v_lshlrev_b32 v{12+i}, 3, v{12+i}")
        a(f"ds_write_b64 v{12+i}, v[{24+2*i}:{25+2*i}] offset:{PL_STAGE}")
    a.label("PREP_E")
    a("s_mov_b64 exec, -1")
    a("s_waitcnt lgkmcnt(0)")
    a("s_barrier")
    srd(a, 40, 8, 9, SLOTS_BYTES, WS_SLOTS)
    a("v_lshlrev_b32 v2, 3, v0")
    for k in range(4):
        a(f"ds_read_b64 v[{24+2*k}:{25+2*k}], v2 offset:{PL_STAGE + k*8192}")
    a("s_waitcnt lgkmcnt(0)")
    for k in range(4):
        a(f"v_lshrrev_b32 v{12+k}, 23, v{24+2*k}")
        a(f"v_min_u32 v{12+k}, {NWG-1}, v{12+k}")
        a(f"v_lshlrev_b32 v{16+k}, 5, v{12+k}")
        a(f"ds_read_b32 v{16+k}, v{16+k}")
    a(f"s_mul_i32 s35, s2, {C}")
    a(f"s_lshl_b32 s36, s2, 5")
    a("s_waitcnt lgkmcnt(0)")
    a("s_mov_b64 s[44:45], 0")
    for k in range(4):
        a(f"v_add_u32 v20, {1024*k}, v0")
        a(f"v_sub_u32 v21, v20, v{16+k}")
        a(f"v_mul_u32_u24 v22, {P*SL}, v{12+k}")
        a(f"v_add3_u32 v22, v22, v21, s36")
        a(f"v_lshlrev_b32 v22, 3, v22")
        a(f"v_cmp_gt_u32 vcc, {C}, v20")
        a(f"s_mov_b64 s[46:47], vcc")
        a(f"v_cmp_gt_u32 vcc, {SL}, v21")
        a(f"s_and_b64 exec, vcc, s[46:47]")
        a(f"buffer_store_dwordx2 v[{24+2*k}:{25+2*k}], v22, s[40:43], 0 offen")
        a(f"s_andn2_b64 exec, s[46:47], vcc")
        a.branch(f"s_cbranch_execz PREP_NOVF{k}")
        a(f"v_add_u32 v22, s35, v20")
        a(f"v_lshlrev_b32 v22, 3, v22")
        a(f"buffer_store_dwordx2 v[{24+2*k}:{25+2*k}], v22, s[24:27], 0 offen")
        a.label(f"PREP_NOVF{k}")
        a("s_mov_b64 exec, -1")
    a.branch("s_branch PREP_END")

    a.label("PREP_W")
    a("s_load_dwordx4 s[12:15], s[0:1], 32")
    a("s_load_dwordx4 s[16:19], s[0:1], 48")
    a("s_load_dwordx2 s[20:21], s[0:1], 64")
    a("s_waitcnt lgkmcnt(0)")
    srd(a, 24, 8, 9, 65536)
    srd(a, 28, 12, 13, 8192)
    srd(a, 32, 14, 15, 8192)
    srd(a, 36, 16, 17, 2048)
    srd(a, 40, 18, 19, 8192)
    srd(a, 44, 20, 21, 8192)
    a("v_and_b32 v1, 31, v0")
    a("v_bfe_u32 v2, v0, 5, 1")
    a("v_bfe_u32 v3, v0, 6, 1")
    a("v_bfe_u32 v4, v0, 7, 2")
    a("v_lshlrev_b32 v5, 12, v2")
    a("v_lshl_add_u32 v5, v4, 10, v5")
    a("v_lshl_add_u32 v5, v1, 2, v5")
    a("v_lshl_add_u32 v5, v3, 1, v5")
    a("v_lshlrev_b32 v6, 4, v0")
    a("v_cmp_gt_u32 vcc, 512, v0")
    a("s_and_saveexec_b64 s[48:49], vcc")
    a.branch("s_cbranch_execz PREP_W2")
    mats = ((32, OFF_WB), (44, OFF_WV), (28, OFF_WA), (40, OFF_WU))
    for mi, (sd, off) in enumerate(mats):
        for j in range(8):
            a(f"buffer_load_ushort v{8+8*mi+j}, v5, s[{sd}:{sd+3}], 0 offen offset:{j*128}")
    a("v_mov_b32 v60, 0xbfb8aa3b")
    for mi, (sd, off) in enumerate(mats):
        a(f"s_waitcnt vmcnt({24-8*mi+mi})")
        for j in range(4):
            if FOLD and off == OFF_WB:
                a(f"v_lshlrev_b32 v{8+8*mi+2*j}, 16, v{8+8*mi+2*j}")
                a(f"v_lshlrev_b32 v{9+8*mi+2*j}, 16, v{9+8*mi+2*j}")
                a(f"v_mul_f32 v{8+8*mi+2*j}, v60, v{8+8*mi+2*j}")
                a(f"v_mul_f32 v{9+8*mi+2*j}, v60, v{9+8*mi+2*j}")
                a(f"v_cvt_pk_bf16_f32 v{40+4*mi+j}, v{8+8*mi+2*j}, v{9+8*mi+2*j}")
            else:
                a(f"v_lshl_or_b32 v{40+4*mi+j}, v{9+8*mi+2*j}, 16, v{8+8*mi+2*j}")
        a(f"s_mov_b32 s50, {off}")
        a(f"buffer_store_dwordx4 v[{40+4*mi}:{43+4*mi}], v6, s[24:27], s50 offen")
    a.label("PREP_W2")
    a("s_mov_b64 exec, -1")
    a("v_subrev_u32 v7, 512, v0")
    a("v_cmp_gt_u32 vcc, 128, v7")
    a("s_and_saveexec_b64 s[48:49], vcc")
    a.branch("s_cbranch_execz PREP_END")
    a("v_lshlrev_b32 v5, 10, v2")
    a("v_lshl_add_u32 v5, v1, 2, v5")
    a("v_lshl_add_u32 v5, v3, 1, v5")
    a("v_lshlrev_b32 v6, 4, v7")
    for j in range(8):
        a(f"buffer_load_ushort v{8+j}, v5, s[36:39], 0 offen offset:{j*128}")
    a("s_waitcnt vmcnt(0)")
    a("v_mov_b32 v60, 0xbfb8aa3b")
    for j in range(4):
        if FOLD:
            a(f"v_lshlrev_b32 v{8+2*j}, 16, v{8+2*j}")
            a(f"v_lshlrev_b32 v{9+2*j}, 16, v{9+2*j}")
            a(f"v_mul_f32 v{8+2*j}, v60, v{8+2*j}")
            a(f"v_mul_f32 v{9+2*j}, v60, v{9+2*j}")
            a(f"v_cvt_pk_bf16_f32 v{16+j}, v{8+2*j}, v{9+2*j}")
        else:
            a(f"v_lshl_or_b32 v{16+j}, v{9+2*j}, 16, v{8+2*j}")
    a(f"s_mov_b32 s50, {OFF_WC}")
    a("buffer_store_dwordx4 v[16:19], v6, s[24:27], s50 offen")
    a.label("PREP_END")
    if X2 == "tl":
        a("s_mov_b64 exec, -1")
        a("s_waitcnt vmcnt(0) lgkmcnt(0)")
        a("s_memrealtime s[62:63]")
        a("s_waitcnt lgkmcnt(0)")
        srd(a, 52, 8, 9, 65536, 128 << 20)
        a("v_lshrrev_b32 v1, 6, v0")
        a("s_lshl_b32 s56, s2, 7")
        a("v_lshl_add_u32 v1, v1, 3, s56")
        a("v_mov_b32 v2, s60")
        a("v_mov_b32 v3, s62")
        a("buffer_store_dwordx2 v[2:3], v1, s[52:55], 0 offen")
    a.label("PREP_END2")
    a("s_endpgm")
    return a.text()


NSLOT = QCAP + 128
L_AP = 0
L_REC = 8192
L_DL = L_REC + NSLOT * 8
L_MLO = L_DL + NSLOT * 4
L_MHI = L_MLO + NSLOT * 2
LDSW = L_MHI + NSLOT * 2
assert LDSW % 256 == 0, LDSW
L_DSC = 0
L_LENW = WPW * 1024
L_TJ = L_LENW + 1024
L_WBASE = L_TJ + 256
LDS_TOTAL = L_WBASE + WPW * LDSW
assert LDS_TOTAL <= 163840
INLOOP = [False]


def mfma32(a, d, x, y, c):
    if X2 == "nomfma" and INLOOP[0]:
        return
    a(f"v_mfma_f32_32x32x16_bf16 {vr(d,16)}, {vr(x,4)}, {vr(y,4)}, {c}")


def gen_main():
    a = Asm()
    R = VAlloc(0, 256)
    R.alloc("tid")
    vL = R.alloc("lane")
    vI = R.alloc("i")
    vH = R.alloc("h")
    vH64 = R.alloc("h64")
    vH16 = R.alloc("h16")
    vN4 = R.alloc("n4")
    vSh = R.alloc("sh")
    vRecA = R.alloc("recaddr")
    vDlA = R.alloc("dladdr")
    vMkA = R.alloc("maskaddr")
    vK = R.alloc("K")
    RC = R.alloc("RC", 2, 2)
    vM1 = R.alloc("m10001")
    vB1 = R.alloc("b3f80")
    WB = R.alloc("WB", 32, 4)
    WV = R.alloc("WV", 32, 4)
    WC = R.alloc("WC", 8, 4)
    DEN = R.alloc("DEN", 32, 4)
    NUM = R.alloc("NUM", 32, 4)
    G = R.alloc("G", 16, 4)
    H = R.alloc("H", 16, 4)
    G1 = R.alloc("G1", 16, 4)
    AD = H
    OH = R.alloc("OH", 8, 4)
    GB = R.alloc("GB", 40, 4)
    vMX = R.alloc("maskx")
    vME = R.alloc("maske")
    print("vgprs used:", R.next, file=sys.stderr)

    SX, SEA, SW, SD, SR_, SO, SS = 8, 12, 16, 20, 24, 28, 56
    s_wv, s_G, s_ns, s_T, s_R, s_NS, s_lds, s_tmp, s_Tn, s_mx, s_q, s_lw = 36, 37, 38, 40, 41, 42, 43, 45, 46, 47, 48, 49

    def ps(k):
        if X2 == "pro":
            a(f"s_memtime s[{60+2*k}:{61+2*k}]")
            a("s_waitcnt lgkmcnt(0)")

    a.raw(".globl main_kernel\n.p2align 8\n.type main_kernel,@function\nmain_kernel:")
    a(f"s_cmp_ge_u32 s2, {NWG}")
    a.branch("s_cbranch_scc1 MAIN_END")
    ps(0)
    if X2 == "tl":
        a("s_memrealtime s[60:61]")
    a("s_load_dwordx4 s[4:7], s[0:1], 0")
    a("s_load_dwordx2 s[32:33], s[0:1], 72")
    a("s_load_dwordx2 s[34:35], s[0:1], 88")
    a(f"v_lshrrev_b32 v{vL}, 6, v0")
    a(f"v_readfirstlane_b32 s{s_wv}, v{vL}")
    a(f"v_and_b32 v{vL}, 63, v0")
    a(f"v_and_b32 v{vI}, 31, v0")
    a(f"v_bfe_u32 v{vH}, v0, 5, 1")
    a(f"v_lshlrev_b32 v{vH64}, 6, v{vH}")
    a(f"v_lshlrev_b32 v{vH16}, 4, v{vH}")
    a(f"v_and_b32 v{vSh}, 15, v0")
    a(f"s_lshl_b32 s{s_G}, s2, 3")
    a(f"s_add_u32 s{s_G}, s{s_G}, s{s_wv}")
    a(f"s_mul_i32 s{s_ns}, s{s_G}, {GN}")
    a(f"s_mul_i32 s{s_lds}, s{s_wv}, {LDSW}")
    a(f"s_add_u32 s{s_lds}, s{s_lds}, {L_WBASE}")
    a(f"s_mov_b32 s{s_q}, {QCAP}")
    a(f"s_mov_b32 s{s_lw}, {LDSW}")
    a(f"v_mov_b32 v{vK}, 0xbfb8aa3b")
    a(f"v_mov_b32 v{vM1}, 0x10001")
    a(f"v_mov_b32 v{vB1}, 0x3f80")
    a(f"v_mov_b32 v{vMX}, 0x007fff80")
    a(f"v_mov_b32 v{vME}, 0xffffffe0")
    a(f"v_lshlrev_b32 v{vN4}, 2, v{vI}")
    a(f"v_add_u32 v{vN4}, s{s_lds}, v{vN4}")
    a("s_waitcnt lgkmcnt(0)")
    srd(a, SD, 34, 35, DESC_BYTES, WS_DESC)
    srd(a, SW, 34, 35, OFF_WC + 2048)
    srd(a, SS, 34, 35, SLOTS_BYTES, WS_SLOTS)
    SLT = GB
    vtmp = GB + 32
    vD = G
    WS0 = H
    a(f"s_mul_i32 s{s_tmp}, s2, {P*32}")
    a(f"v_lshl_add_u32 v{vtmp}, v0, 5, s{s_tmp}")
    a(f"v_mov_b32 v{vtmp+3}, {BIG}")
    a(f"v_cmp_gt_u32 vcc, {P}, v0")
    a(f"v_cndmask_b32 v{vtmp}, v{vtmp+3}, v{vtmp}, vcc")
    a(f"buffer_load_dwordx4 {vr(vD,4)}, v{vtmp}, s[{SD}:{SD+3}], 0 offen")
    a(f"buffer_load_dwordx4 {vr(vD+4,4)}, v{vtmp}, s[{SD}:{SD+3}], 0 offen offset:16")
    a(f"v_lshlrev_b32 v{vtmp+2}, 4, v0")
    for k in range(4):
        a(f"s_mov_b32 s{s_tmp}, {k*8192}")
        a(f"buffer_load_dwordx4 {vr(WS0+4*k,4)}, v{vtmp+2}, s[{SW}:{SW+3}], s{s_tmp} offen")

    def slot_addr():
        a(f"v_lshrrev_b32 v{vtmp+2}, 3, v0")
        a(f"v_lshlrev_b32 v{vtmp+2}, 8, v{vtmp+2}")
        a(f"v_and_b32 v{vtmp+3}, 7, v0")
        a(f"v_lshl_add_u32 v{vtmp+2}, v{vtmp+3}, 4, v{vtmp+2}")

    def load_slots():
        slot_addr()
        for k in range(4):
            a(f"s_mul_i32 s{s_tmp}, s2, {P*SL*8}")
            a(f"s_add_u32 s{s_tmp}, s{s_tmp}, {k*16384}")
            a(f"buffer_load_dwordx4 {vr(SLT+4*k,4)}, v{vtmp+2}, s[{SS}:{SS+3}], s{s_tmp} offen")

    srd(a, SX, 4, 5, N * 128)
    srd(a, SEA, 6, 7, E * 32)
    srd(a, SW, 34, 35, 65536)
    srd(a, SR_, 34, 35, RECS_BYTES, WS_RECS)
    srd(a, SO, 32, 33, N * 128)
    for k in range(32):
        a(f"v_mov_b32 v{DEN+k}, 0")
    a("s_waitcnt vmcnt(4)")
    a(f"v_lshlrev_b32 v{vtmp}, 2, v0")
    a(f"v_lshrrev_b32 v{vtmp+4}, 16, v{vD}")
    for j in range(1, 8):
        a(f"v_lshrrev_b32 v{vtmp+5}, 16, v{vD+j}")
        a(f"v_add_u32 v{vtmp+4}, v{vtmp+4}, v{vtmp+5}")
    a(f"v_lshl_or_b32 v{vtmp+4}, v{vD}, 16, v{vtmp+4}")
    a(f"v_cmp_gt_u32 vcc, 256, v0")
    a("s_and_saveexec_b64 s[52:53], vcc")
    a.branch("s_cbranch_execz DSC_SKIP")
    for j in range(WPW):
        a(f"ds_write_b32 v{vtmp}, v{vD+j} offset:{L_DSC + j*1024}")
    a(f"ds_write_b32 v{vtmp}, v{vtmp+4} offset:{L_LENW}")
    a.label("DSC_SKIP")
    a("s_mov_b64 exec, -1")
    a("s_waitcnt vmcnt(0)")
    for k in range(4):
        if k == 3:
            a(f"v_cmp_gt_u32 vcc, 128, v0")
            a("s_and_saveexec_b64 s[52:53], vcc")
            a.branch("s_cbranch_execz WST_SKIP")
        a(f"ds_write_b128 v{vtmp+2}, {vr(WS0+4*k,4)} offset:{L_WBASE + k*LDSW + L_AP if k < 3 else L_WBASE + L_REC}")
    a.label("WST_SKIP")
    a("s_mov_b64 exec, -1")
    a("s_waitcnt lgkmcnt(0)")
    a("s_barrier")
    ps(1)
    load_slots()
    WAt = NUM
    XO = G
    vC = G1
    vS = G1 + 4
    vLw = G1 + 8
    vTot = G1 + 12
    vInc = G1 + 13
    vB = OH
    a(f"s_lshl_b32 s{s_tmp}, s{s_wv}, 10")
    a(f"v_lshl_add_u32 v{vtmp}, v{vL}, 2, s{s_tmp}")
    a(f"v_lshlrev_b32 v{vtmp+1}, 2, v{vL}")
    for k in range(4):
        a(f"ds_read_b32 v{vD+k}, v{vtmp} offset:{L_DSC + k*256}")
    for k in range(4):
        a(f"ds_read_b32 v{vLw+k}, v{vtmp+1} offset:{L_LENW + k*256}")
    a(f"v_lshlrev_b32 v{vtmp+2}, 4, v{vL}")
    for (base, off) in ((WAt, OFF_WA), (WB, OFF_WB), (WV, OFF_WV)):
        for k in range(8):
            a(f"ds_read_b128 {vr(base+4*k,4)}, v{vtmp+2} offset:{L_WBASE + (off//8192)*LDSW + L_AP + k*1024}")
    for c in range(2):
        a(f"ds_read_b128 {vr(WC+4*c,4)}, v{vtmp+2} offset:{L_WBASE + L_REC + c*1024}")
    a("s_waitcnt lgkmcnt(15)")
    for k in range(4):
        a(f"v_lshrrev_b32 v{vC+k}, 16, v{vD+k}")
        a(f"v_and_b32 v{vS+k}, 0xffff, v{vD+k}")
    a(f"v_add_u32 v{vTot}, v{vC}, v{vC+1}")
    a(f"v_add3_u32 v{vTot}, v{vTot}, v{vC+2}, v{vC+3}")
    a(f"v_mov_b32 v{vInc}, v{vTot}")
    wave_scan(a, vInc)
    a(f"v_readlane_b32 s{s_T}, v{vInc}, 63")
    a(f"v_sub_u32 v{vB}, v{vInc}, v{vTot}")
    a(f"v_add_u32 v{vB+1}, v{vB}, v{vC}")
    a(f"v_add_u32 v{vB+2}, v{vB+1}, v{vC+1}")
    a(f"v_add_u32 v{vB+3}, v{vB+2}, v{vC+2}")
    for k in range(4):
        a(f"v_lshrrev_b32 v{vLw+k}, 16, v{vLw+k}")
        a(f"v_sub_u32 v{vB+k}, v{vB+k}, v{vS+k}")
        a(f"v_add_u32 v{vB+k}, v{vB+k}, v{vLw+k}")
        a(f"ds_write_b32 v{vtmp}, v{vB+k} offset:{L_DSC + k*256}")
    a(f"v_mov_b32 v{vTot}, s{s_T}")
    a(f"s_lshl_b32 s{s_tmp}, s{s_wv}, 2")
    a(f"v_mov_b32 v{vInc}, s{s_tmp}")
    a(f"ds_write_b32 v{vInc}, v{vTot} offset:{L_TJ}")
    a("s_waitcnt lgkmcnt(0)")
    a("s_barrier")
    ps(2)
    a(f"v_mov_b32 v{vInc}, 0")
    a(f"ds_read_b128 {vr(G1,4)}, v{vInc} offset:{L_TJ}")
    a(f"ds_read_b128 {vr(G1+4,4)}, v{vInc} offset:{L_TJ+16}")
    a("s_waitcnt lgkmcnt(0)")
    if os.environ.get("BAL", "1") == "1":
        vkj, vrk, vt_ = G1 + 8, G1 + 9, G1 + 10
        a(f"v_and_b32 v{vt_}, 7, v{vL}")
        a(f"v_lshlrev_b32 v{vkj}, 2, v{vt_}")
        a(f"ds_read_b32 v{vkj}, v{vkj} offset:{L_TJ}")
        a(f"v_mov_b32 v{vrk}, 0")
        a("s_waitcnt lgkmcnt(0)")
        a(f"v_lshl_add_u32 v{vkj}, v{vkj}, 3, v{vt_}")
        for k in range(8):
            a(f"v_lshl_add_u32 v{vt_}, v{G1+k}, 3, {k}")
            a(f"v_cmp_gt_u32 vcc, v{vt_}, v{vkj}")
            a(f"v_addc_co_u32 v{vrk}, vcc, 0, v{vrk}, vcc")
        a(f"s_sub_u32 s{s_tmp}, 11, s{s_wv}")
        a(f"s_cmp_lt_u32 s{s_wv}, 4")
        a(f"s_cselect_b32 s{s_tmp}, s{s_wv}, s{s_tmp}")
        a(f"v_cmp_eq_u32 vcc, s{s_tmp}, v{vrk}")
        a(f"s_ff1_i32_b64 s{s_tmp}, vcc")
        a(f"v_readlane_b32 s{s_T}, v{vkj}, s{s_tmp}")
        a(f"s_lshr_b32 s{s_T}, s{s_T}, 3")
        a(f"s_lshl_b32 s{s_G}, s2, 3")
        a(f"s_add_u32 s{s_G}, s{s_G}, s{s_tmp}")
        a(f"s_mul_i32 s{s_ns}, s{s_G}, {GN}")
        a(f"s_mul_i32 s{s_lds}, s{s_tmp}, {LDSW}")
        a(f"s_add_u32 s{s_lds}, s{s_lds}, {L_WBASE}")
        a(f"v_lshlrev_b32 v{vN4}, 2, v{vI}")
        a(f"v_add_u32 v{vN4}, s{s_lds}, v{vN4}")
    a(f"v_max3_u32 v{G1}, v{G1}, v{G1+1}, v{G1+2}")
    a(f"v_max3_u32 v{G1}, v{G1}, v{G1+3}, v{G1+4}")
    a(f"v_max3_u32 v{G1}, v{G1}, v{G1+5}, v{G1+6}")
    a(f"v_max_u32 v{G1}, v{G1}, v{G1+7}")
    a(f"v_readfirstlane_b32 s{s_mx}, v{G1}")
    a(f"s_mov_b32 s{s_R}, 0")

    a.label("ROUND")
    a(f"s_sub_u32 s{s_Tn}, s{s_T}, s{s_R}")
    a(f"s_cselect_b32 s{s_Tn}, 0, s{s_Tn}")
    a(f"s_min_u32 s{s_Tn}, s{s_Tn}, {QCAP}")
    vt = H
    vi, vad, vval, vdum = vt, vt + 1, vt + 2, vt + 4
    a(f"v_mov_b32 v{vdum}, 0x007fff80")
    a(f"v_mov_b32 v{vdum+1}, {BIG}")
    a(f"v_add_u32 v{vi}, s{s_Tn}, v{vL}")
    a(f"v_lshl_add_u32 v{vad}, v{vi}, 3, s{s_lds}")
    a(f"ds_write_b64 v{vad}, {vr(vdum,2)} offset:{L_REC}")
    a(f"ds_write_b64 v{vad}, {vr(vdum,2)} offset:{L_REC+512}")
    a(f"v_lshl_add_u32 v{vad}, v{vi}, 2, s{s_lds}")
    a(f"v_mov_b32 v{vval}, {31*256}")
    a(f"ds_write_b32 v{vad}, v{vval} offset:{L_DL}")
    a(f"ds_write_b32 v{vad}, v{vval} offset:{L_DL+256}")
    a(f"v_lshl_add_u32 v{vad}, v{vi}, 1, s{s_lds}")
    a(f"v_mov_b32 v{vval}, 0")
    a(f"ds_write_b16 v{vad}, v{vval} offset:{L_MLO}")
    a(f"ds_write_b16 v{vad}, v{vval} offset:{L_MLO+128}")
    a(f"ds_write_b16 v{vad}, v{vval} offset:{L_MHI}")
    a(f"ds_write_b16 v{vad}, v{vval} offset:{L_MHI+128}")
    vT4 = vt + 6
    vS0 = vt + 7
    vSR0 = vt + 8
    vLen = G1
    vDl = OH
    vj, vpos, vwb, va = vt + 9, vt + 10, vt + 11, vt + 15
    vLDSW = vt + 3
    vS1 = RC
    vSR1 = RC + 1
    a(f"v_lshrrev_b32 v{vT4}, 3, v0")
    a(f"v_lshlrev_b32 v{vT4}, 2, v{vT4}")
    a(f"v_and_b32 v{vS0}, 7, v0")
    a(f"v_lshlrev_b32 v{vS0}, 1, v{vS0}")
    for k in range(4):
        a(f"ds_read_b32 v{vLen+k}, v{vT4} offset:{L_LENW + k*256}")
    a(f"v_mov_b32 v{vLDSW}, {LDSW}")
    slot_addr()
    a(f"v_mov_b32 v{vtmp+3}, {BIG}")
    a(f"v_add_u32 v{vS1}, 16, v{vS0}")
    a("s_waitcnt lgkmcnt(0)")
    for k in range(4):
        a(f"v_and_b32 v{vLen+k}, 0xffff, v{vLen+k}")
    for k in range(4):
        a(f"v_cmp_lt_u32 vcc, v{vS1}, v{vLen+k}")
        a(f"v_cndmask_b32 v{vtmp+4+k}, v{vtmp+3}, v{vtmp+2}, vcc")
        a(f"s_mul_i32 s{s_tmp}, s2, {P*SL*8}")
        a(f"s_add_u32 s{s_tmp}, s{s_tmp}, {k*16384 + 128}")
        a(f"buffer_load_dwordx4 {vr(SLT+16+4*k,4)}, v{vtmp+4+k}, s[{SS}:{SS+3}], s{s_tmp} offen")

    def scatter(w0, w1, vdelta, vsr, valid_cmp):
        a(f"v_add_u32 v{vpos}, v{vdelta}, v{vsr}")
        a(f"v_and_b32 v{vj}, 7, v{w1}")
        a(f"v_mul_u32_u24 v{vwb}, v{vj}, v{vLDSW}")
        valid_cmp()
        a(f"v_cmp_gt_u32 s[52:53], s{s_q}, v{vpos}")
        a(f"v_lshl_add_u32 v{va}, v{vpos}, 3, v{vwb}")
        a(f"s_and_b64 exec, vcc, s[52:53]")
        a(f"ds_write_b64 v{va}, v[{w0}:{w1}] offset:{L_WBASE + L_REC}")
        a("s_mov_b64 exec, -1")

    for lvl in range(2):
        a(f"s_waitcnt vmcnt(4)")
        if lvl == 1:
            a(f"s_cmp_eq_u32 s{s_R}, 0")
            a.branch("s_cbranch_scc1 L2_OK")
            a("s_waitcnt vmcnt(0)")
            a.label("L2_OK")
        if lvl == 0:
            ps(3)
        a(f"v_add_u32 v{vS1}, 1, v{vS0}")
        a(f"v_subrev_u32 v{vSR0}, s{s_R}, v{vS0}")
        a(f"v_add_u32 v{vSR1}, 1, v{vSR0}")
        for k in range(4):
            for e in range(2):
                w1 = SLT + 16 * lvl + 4 * k + 2 * e + 1
                a(f"v_and_b32 v{vj}, 7, v{w1}")
                a(f"v_lshl_add_u32 v{va}, v{vj}, 10, v{vT4}")
                a(f"ds_read_b32 v{vDl+2*k+e}, v{va} offset:{L_DSC + k*256}")
        a("s_waitcnt lgkmcnt(0)")
        for k in range(4):
            for e in range(2):
                w0 = SLT + 16 * lvl + 4 * k + 2 * e
                scatter(w0, w0 + 1, vDl + 2 * k + e, vSR0 if e == 0 else vSR1,
                        lambda k=k, e=e: a(f"v_cmp_lt_u32 vcc, v{vS0 if e == 0 else vS1}, v{vLen+k}"))
        if lvl == 0:
            a(f"v_add_u32 v{vS0}, 16, v{vS0}")
            XO = GB
            a(f"s_cmp_lg_u32 s{s_R}, 0")
            a.branch("s_cbranch_scc1 XO_SKIP")
            a(f"v_add_u32 v{va}, s{s_ns}, v{vI}")
            a(f"v_lshl_add_u32 v{va}, v{va}, 7, v{vH64}")
            for s in range(4):
                a(f"buffer_load_dwordx4 {vr(XO+4*s,4)}, v{va}, s[{SX}:{SX+3}], 0 offen offset:{16*s}")
            a.label("XO_SKIP")
    vo_len, vo_s, vo_base = G1, G1 + 1, G1 + 2
    vo_rec = G1 + 4
    vo_d, vo_sr = G1 + 6, G1 + 7
    a(f"v_lshlrev_b32 v{vad}, 2, v0")
    a(f"v_and_b32 v{vad}, 0x3ff, v{vad}")
    a(f"ds_read_b32 v{vo_len}, v{vad} offset:{L_LENW}")
    a("s_waitcnt lgkmcnt(0)")
    a(f"v_lshrrev_b32 v{vo_base}, 16, v{vo_len}")
    a(f"v_and_b32 v{vo_len}, 0xffff, v{vo_len}")
    a(f"v_cmp_gt_u32 vcc, 256, v0")
    a(f"v_cndmask_b32 v{vo_len}, 0, v{vo_len}, vcc")
    a(f"v_mul_u32_u24 v{vo_s}, {C}, v0")
    a(f"v_add_u32 v{vo_base}, v{vo_base}, v{vo_s}")
    a(f"v_mov_b32 v{vo_s}, {SL}")
    a.label("OVF")
    a(f"v_cmp_lt_u32 vcc, v{vo_s}, v{vo_len}")
    a("s_nop 1")
    a("s_cbranch_vccz OVF_DONE")
    a(f"v_add_u32 v{vo_d}, v{vo_base}, v{vo_s}")
    a(f"v_lshlrev_b32 v{vo_d}, 3, v{vo_d}")
    a(f"v_mov_b32 v{vo_sr}, {BIG}")
    a(f"v_cndmask_b32 v{vo_d}, v{vo_sr}, v{vo_d}, vcc")
    a(f"buffer_load_dwordx2 {vr(vo_rec,2)}, v{vo_d}, s[{SR_}:{SR_+3}], 0 offen")
    a("s_waitcnt vmcnt(0)")
    a(f"v_and_b32 v{vj}, 7, v{vo_rec+1}")
    a(f"v_lshl_add_u32 v{va}, v{vj}, 10, v{vad}")
    a(f"ds_read_b32 v{vo_d}, v{va} offset:{L_DSC}")
    a(f"v_subrev_u32 v{vo_sr}, s{s_R}, v{vo_s}")
    a("s_waitcnt lgkmcnt(0)")
    scatter(vo_rec, vo_rec + 1, vo_d, vo_sr, lambda: a(f"v_cmp_lt_u32 vcc, v{vo_s}, v{vo_len}"))
    a(f"v_add_u32 v{vo_s}, 1, v{vo_s}")
    a.branch("s_branch OVF")
    a.label("OVF_DONE")
    ps(4)
    a("s_waitcnt lgkmcnt(0)")
    a("s_barrier")
    ps(5)
    NM = QCAP // 64
    a(f"v_lshl_add_u32 v{RC}, v{vL}, 3, s{s_lds}")
    for m in range(NM):
        a(f"ds_read_b32 v{G+m}, v{RC} offset:{L_REC + m*512}")
    a(f"v_lshl_add_u32 v{G1}, v{vL}, 2, s{s_lds}")
    a(f"v_lshl_add_u32 v{G1+1}, v{vL}, 1, s{s_lds}")
    a("s_waitcnt lgkmcnt(0)")
    for m in range(NM):
        a(f"v_add_u32 v{G1+2}, {64*m}, v{vL}")
        a(f"v_cmp_gt_u32 vcc, s{s_Tn}, v{G1+2}")
        a(f"s_and_b64 exec, exec, vcc")
        a.branch(f"s_cbranch_execz DRV_DONE")
        a(f"v_and_b32 v{G+m}, 31, v{G+m}")
        a(f"v_lshlrev_b32 v{G1+3}, v{G+m}, 1")
        a(f"v_lshrrev_b32 v{G1+4}, 16, v{G1+3}")
        a(f"v_lshlrev_b32 v{G+m}, 8, v{G+m}")
        a(f"ds_write_b32 v{G1}, v{G+m} offset:{L_DL + m*256}")
        a(f"ds_write_b16 v{G1+1}, v{G1+3} offset:{L_MLO + m*128}")
        a(f"ds_write_b16 v{G1+1}, v{G1+4} offset:{L_MHI + m*128}")
    a.label("DRV_DONE")
    a("s_mov_b64 exec, -1")
    ps(6)
    a(f"s_add_u32 s{s_NS}, s{s_Tn}, 31")
    a(f"s_lshr_b32 s{s_NS}, s{s_NS}, 5")
    a(f"v_lshl_add_u32 v{vRecA}, v{vI}, 3, s{s_lds}")
    a(f"v_lshl_add_u32 v{vDlA}, v{vH}, 4, s{s_lds}")
    a(f"v_bfe_u32 v{RC}, v{vI}, 4, 1")
    a(f"v_mul_u32_u24 v{RC}, {L_MHI-L_MLO}, v{RC}")
    a(f"v_lshl_add_u32 v{vMkA}, v{vH}, 3, s{s_lds}")
    a(f"v_add_u32 v{vMkA}, v{vMkA}, v{RC}")

    def gathers(b):
        base = GB + 20 * b
        a(f"v_and_or_b32 v{RC}, v{RC}, v{vMX}, v{vH64}")
        a(f"v_and_or_b32 v{RC+1}, v{RC+1}, v{vME}, v{vH16}")
        for s in range(4):
            a(f"buffer_load_dwordx4 {vr(base+4*s,4)}, v{RC}, s[{SX}:{SX+3}], 0 offen offset:{16*s}")
        a(f"buffer_load_dwordx4 {vr(base+16,4)}, v{RC+1}, s[{SEA}:{SEA+3}], 0 offen nt")

    a(f"ds_read_b64 {vr(RC,2)}, v{vRecA} offset:{L_REC}")
    a("s_waitcnt lgkmcnt(0)")
    gathers(1)
    a(f"s_cmp_lg_u32 s{s_R}, 0")
    a.branch("s_cbranch_scc1 AP_DONE")
    a("s_waitcnt vmcnt(5)")
    a(f"v_lshl_add_u32 v{RC}, v{vH}, 10, v{vN4}")
    for c in range(2):
        d = H if c == 0 else G1
        for s in range(4):
            mfma32(a, d, XO + 4 * s, WAt + 4 * (2 * s + c), "0" if s == 0 else vr(d, 16))
    for c in range(2):
        d = H if c == 0 else G1
        for r in range(16):
            row = 8 * (r >> 2) + (r & 3)
            if FOLD:
                a(f"v_mul_f32 v{d+r}, v{vK}, v{d+r}")
            a(f"ds_write_b32 v{RC}, v{d+r} offset:{L_AP + row*256 + c*128}")
    for k in range(32):
        a(f"v_mov_b32 v{NUM+k}, 0")
    a.label("AP_DONE")
    ps(7)
    a(f"s_cmp_eq_u32 s{s_NS}, 0")
    a.branch("s_cbranch_scc1 LOOP_DONE")
    if EXP == "noloop":
        a.branch("s_branch EPILOGUE")
    if EXP in ("nogather", "noea"):
        a(f"s_mov_b32 s{SEA+2}, 0")
    if EXP in ("nogather", "nox"):
        a(f"s_mov_b32 s{SX+2}, 0")

    def merge(valu, mf, first_gap=0):
        n, m = len(valu), len(mf)
        pos = [first_gap + (k * (n - first_gap)) // max(m, 1) for k in range(m)]
        k = 0
        for idx, ins in enumerate(valu):
            while k < m and pos[k] <= idx:
                mf[k]()
                k += 1
            a(ins)
        while k < m:
            mf[k]()
            k += 1

    def valu_g(g):
        L = []
        for r in range(16):
            if not FOLD:
                L.append(f"v_mul_f32 v{g+r}, v{vK}, v{g+r}")
        for r in range(16):
            L.append(f"v_exp_f32 v{g+r}, v{g+r}")
        for r in range(16):
            L.append(f"v_add_f32 v{g+r}, 1.0, v{g+r}")
        for r in range(16):
            L.append(f"v_rcp_f32 v{g+r}, v{g+r}")
        return L

    def pc(g):
        for r in range(16):
            a(f"v_mul_f32 v{H+r}, v{H+r}, v{g+r}")
        for j in range(8):
            a(f"v_cvt_pk_bf16_f32 v{g+j}, v{g+2*j}, v{g+2*j+1}")
        for j in range(8):
            a(f"v_cvt_pk_bf16_f32 v{H+j}, v{H+2*j}, v{H+2*j+1}")

    def gchain(b, c, g):
        base = GB + 20 * b
        L = [(lambda s=s: mfma32(a, g, base + 4 * s, WB + 4 * (2 * s + c), vr(g, 16))) for s in range(4)]
        L.append(lambda: mfma32(a, g, base + 16, WC + 4 * c, vr(g, 16)))
        return L

    def hchain(b, c):
        base = GB + 20 * b
        return [(lambda s=s: mfma32(a, H, base + 4 * s, WV + 4 * (2 * s + c), "0" if s == 0 else vr(H, 16))) for s in range(4)]

    def rchain(c, g):
        L = []
        for s in range(2):
            L.append(lambda s=s: mfma32(a, DEN + 16 * c, OH + 4 * s, g + 4 * s, vr(DEN + 16 * c, 16)))
            L.append(lambda s=s: mfma32(a, NUM + 16 * c, OH + 4 * s, H + 4 * s, vr(NUM + 16 * c, 16)))
        return L

    def step(b):
        a(f"ds_read_b64 {vr(RC,2)}, v{vRecA} offset:{L_REC + 256}")
        for q in range(4):
            a(f"ds_read_b128 {vr(AD+4*q,4)}, v{vDlA} offset:{L_DL + q*32}")
        for q in range(4):
            a(f"ds_read_b64 {vr(OH+2*q,2)}, v{vMkA} offset:{L_MLO + q*16}")
        a("s_waitcnt lgkmcnt(8)")
        gathers(1 - b)
        a("s_waitcnt lgkmcnt(4)")
        for k in range(16):
            a(f"v_add_u32 v{AD+k}, v{AD+k}, v{vN4}")
        for r in range(16):
            a(f"ds_read_b32 v{G+r}, v{AD+r} offset:{L_AP}")
        for r in range(16):
            a(f"ds_read_b32 v{G1+r}, v{AD+r} offset:{L_AP + 128}")
        a("s_waitcnt vmcnt(5) lgkmcnt(15)")
        ohl = []
        for k in range(8):
            ohl.append(f"v_lshrrev_b32 v{OH+k}, v{vSh}, v{OH+k}")
        for k in range(8):
            ohl.append(f"v_and_b32 v{OH+k}, v{vM1}, v{OH+k}")
        for k in range(8):
            ohl.append(f"v_mul_u32_u24 v{OH+k}, v{vB1}, v{OH+k}")
        ohl.append(f"v_add_u32 v{vRecA}, 256, v{vRecA}")
        ohl.append(f"v_add_u32 v{vDlA}, 128, v{vDlA}")
        ohl.append(f"v_add_u32 v{vMkA}, 64, v{vMkA}")
        merge(ohl, gchain(b, 0, G))
        a("s_waitcnt lgkmcnt(0)")
        merge(valu_g(G), hchain(b, 0) + gchain(b, 1, G1))
        pc(G)
        merge(valu_g(G1), rchain(0, G) + hchain(b, 1))
        pc(G1)
        for f in rchain(1, G1):
            f()

    a.label("LOOP")
    INLOOP[0] = True
    for b in (1, 0):
        step(b)
        a(f"s_sub_u32 s{s_NS}, s{s_NS}, 1")
        a(f"s_cmp_eq_u32 s{s_NS}, 0")
        if b == 1:
            a.branch("s_cbranch_scc1 LOOP_DONE")
        else:
            a.branch("s_cbranch_scc0 LOOP")
    a.label("LOOP_DONE")
    INLOOP[0] = False
    a("s_waitcnt vmcnt(0) lgkmcnt(0)")
    a(f"s_add_u32 s{s_R}, s{s_R}, {QCAP}")
    a(f"s_cmp_ge_u32 s{s_R}, s{s_mx}")
    a.branch("s_cbranch_scc1 EPILOGUE")
    a("s_barrier")
    load_slots()
    a("s_waitcnt vmcnt(0)")
    a.branch("s_branch ROUND")

    a.label("EPILOGUE")
    a("s_waitcnt vmcnt(0) lgkmcnt(0)")
    if EXP in ("nogather", "nox"):
        a(f"s_mov_b32 s{SX+2}, {N*128}")
    WUt = WB
    XD = WV
    VO = WV + 16
    XO = GB
    a(f"v_lshlrev_b32 v{vtmp+2}, 4, v{vL}")
    for k in range(8):
        if k % 4 == 0:
            a(f"s_mov_b32 s{s_tmp}, {OFF_WU + k*1024}")
        a(f"buffer_load_dwordx4 {vr(WUt+4*k,4)}, v{vtmp+2}, s[{SW}:{SW+3}], s{s_tmp} offen offset:{(k%4)*1024}")
    a(f"v_add_u32 v{vtmp+1}, s{s_ns}, v{vI}")
    a(f"v_lshl_add_u32 v{vtmp+1}, v{vtmp+1}, 7, v{vH64}")
    for s in range(4):
        a(f"buffer_load_dwordx4 {vr(XO+4*s,4)}, v{vtmp+1}, s[{SX}:{SX+3}], 0 offen offset:{16*s}")
    a(f"v_lshl_add_u32 v{vtmp}, v{vH}, 2, s{s_ns}")
    a(f"v_lshlrev_b32 v{vtmp}, 7, v{vtmp}")
    a(f"v_lshl_add_u32 v{vtmp}, v{vI}, 2, v{vtmp}")
    for r in range(16):
        row = 8 * (r >> 2) + (r & 3)
        a(f"buffer_load_dword v{XD+r}, v{vtmp}, s[{SX}:{SX+3}], 0 offen offset:{row*128}")
    a(f"v_mov_b32 v{vtmp+3}, {BIG}")
    a(f"v_lshlrev_b32 v{vtmp+1}, 2, v{vH}")
    for r in range(16):
        row = 8 * (r >> 2) + (r & 3)
        a(f"v_cmp_gt_u32 vcc, {GN-row if GN-row>0 else 0}, v{vtmp+1}")
        a(f"v_add_u32 v{VO+r}, {row*128}, v{vtmp}")
        a(f"v_cndmask_b32 v{VO+r}, v{vtmp+3}, v{VO+r}, vcc")
    a(f"v_mov_b32 v{vtmp+3}, 0x358637bd")
    for k in range(32):
        a(f"v_add_f32 v{DEN+k}, v{vtmp+3}, v{DEN+k}")
    for k in range(32):
        a(f"v_rcp_f32 v{DEN+k}, v{DEN+k}")
    a("s_waitcnt vmcnt(16)")
    for c in range(2):
        d = G if c == 0 else H
        for s in range(4):
            mfma32(a, d, XO + 4 * s, WUt + 4 * (2 * s + c), "0" if s == 0 else vr(d, 16))
    for c in range(2):
        d = G if c == 0 else H
        for r in range(16):
            a(f"v_fma_f32 v{d+r}, v{NUM+16*c+r}, v{DEN+16*c+r}, v{d+r}")
        for r in range(16):
            a(f"v_max_f32 v{d+r}, 0, v{d+r}")
    a("s_waitcnt vmcnt(0)")
    for r in range(16):
        a(f"v_lshlrev_b32 v{G1}, 16, v{XD+r}")
        a(f"v_and_b32 v{G1+1}, 0xffff0000, v{XD+r}")
        a(f"v_add_f32 v{G1}, v{G1}, v{G+r}")
        a(f"v_add_f32 v{G1+1}, v{G1+1}, v{H+r}")
        a(f"v_cvt_pk_bf16_f32 v{XD+r}, v{G1}, v{G1+1}")
        a(f"buffer_store_dword v{XD+r}, v{VO+r}, s[{SO}:{SO+3}], 0 offen")
    if X2 == "tl":
        a("s_waitcnt vmcnt(0) lgkmcnt(0)")
        a("s_memrealtime s[62:63]")
        a("s_waitcnt lgkmcnt(0)")
        srd(a, 52, 34, 35, 65536, (128 << 20) + 65536)
        a(f"s_lshl_b32 s{s_tmp}, s{s_G}, 3")
        a(f"v_mov_b32 v1, s{s_tmp}")
        a("v_mov_b32 v2, s60")
        a("v_mov_b32 v3, s62")
        a("buffer_store_dwordx2 v[2:3], v1, s[52:55], 0 offen")
    if X2 == "pro":
        a(f"s_lshr_b32 s84, s{s_G}, 3")
        a(f"s_cmp_lg_u32 s84, 37")
        a.branch("s_cbranch_scc1 MAIN_END")
        a("s_load_dwordx2 s[80:81], s[0:1], 80")
        a("s_waitcnt lgkmcnt(0)")
        a("s_mov_b32 s82, 256")
        a("s_mov_b32 s83, 0x00020000")
        a(f"s_lshl_b32 s85, s{s_wv}, 5")
        for k in range(7):
            a(f"s_sub_u32 s84, s{62+2*k}, s60")
            a(f"v_mov_b32 v{RC}, s84")
            a(f"v_mov_b32 v{RC+1}, {4*k}")
            a(f"buffer_store_dword v{RC}, v{RC+1}, s[80:83], s85 offen")
        a("s_waitcnt vmcnt(0)")
    a.label("MAIN_END")
    a("s_endpgm")
    return a.text()


def kd(name, vgpr, sgpr):
    acc = (vgpr + 3) // 4 * 4
    return f""".amdhsa_kernel {name}
  .amdhsa_next_free_vgpr {vgpr}
  .amdhsa_next_free_sgpr {sgpr}
  .amdhsa_accum_offset {acc}
  .amdhsa_group_segment_fixed_size 0
  .amdhsa_kernarg_size 96
  .amdhsa_user_sgpr_count 2
  .amdhsa_user_sgpr_kernarg_segment_ptr 1
  .amdhsa_system_sgpr_workgroup_id_x 1
.end_amdhsa_kernel
"""


def main():
    out = HEADER
    out += f"; @launch kernel=prep_kernel grid=({P+1},1,1) block=(1024,1,1) lds={PREP_LDS}\n"
    out += f"; @launch kernel=main_kernel grid=({NWG},1,1) block=({64*WPW},1,1) lds={LDS_TOTAL}\n"
    out += '.amdgcn_target "amdgcn-amd-amdhsa--gfx950"\n.text\n'
    out += gen_prep()
    out += gen_main()
    out += '.section .rodata,"a"\n.p2align 6\n'
    out += kd("prep_kernel", 64, 64)
    out += ".p2align 6\n"
    out += kd("main_kernel", 256, 96)
    path = sys.argv[1] if len(sys.argv) > 1 else "gather_scatter__edge_featured_mpnn_gatedgcn__graph.s"
    open(path, "w").write(out)


if __name__ == "__main__":
    main()
```

```python
import sys, os
from emit import Asm, VAlloc, vr, sr

N = 50000
E = 800000
P = 250
C = 3200
NG = 2000
GN = 25
WPW = 8
NWG = NG // WPW
QCAP = 512

OFF_WB, OFF_WV, OFF_WA, OFF_WC, OFF_WU = 0, 8192, 16384, 24576, 32768
WS_DESC = 65536
DESC_BYTES = P * NG * 4
WS_RECS = 4194304
RECS_BYTES = E * 8
SL = 32
WS_SLOTS = 16 << 20
SLOTS_BYTES = NWG * P * SL * 8
MAGIC25 = 171798692
BIG = 0x40000000
EXP = os.environ.get("EXP", "")
FOLD = os.environ.get("FOLD", "1") == "1"
X2 = os.environ.get("X2", "")

HEADER = open("gather_scatter__edge_featured_mpnn_gatedgcn__graph.s.ref").read().split("; @launch")[0]


def srd(a, d, lo, hi, nbytes, add=0):
    if add:
        a(f"s_add_u32 s{d}, s{lo}, {add}")
        a(f"s_addc_u32 s{d+1}, s{hi}, 0")
    else:
        a(f"s_mov_b32 s{d}, s{lo}")
        a(f"s_mov_b32 s{d+1}, s{hi}")
    a(f"s_and_b32 s{d+1}, s{d+1}, 0xffff")
    a(f"s_mov_b32 s{d+2}, {nbytes}")
    a(f"s_mov_b32 s{d+3}, 0x00020000")


def wave_scan(a, v):
    for sh in (1, 2, 4, 8):
        a(f"v_add_u32_dpp v{v}, v{v}, v{v} row_shr:{sh} row_mask:0xf bank_mask:0xf bound_ctrl:0")
    a(f"v_add_u32_dpp v{v}, v{v}, v{v} row_bcast:15 row_mask:0xa bank_mask:0xf")
    a(f"v_add_u32_dpp v{v}, v{v}, v{v} row_bcast:31 row_mask:0xc bank_mask:0xf")


PL_STAGE = NG * 4 + 64
PREP_LDS = PL_STAGE + 4096 * 8


def gen_prep():
    a = Asm()
    a.raw(".globl prep_kernel\n.p2align 8\n.type prep_kernel,@function\nprep_kernel:")
    a(f"s_cmp_gt_u32 s2, {P}")
    a.branch("s_cbranch_scc1 PREP_END2")
    if X2 == "tl":
        a("s_memrealtime s[60:61]")
    a("s_load_dwordx4 s[4:7], s[0:1], 16")
    a("s_load_dwordx2 s[8:9], s[0:1], 88")
    if os.environ.get("IPF", "1") == "1":
        a("s_getpc_b64 s[58:59]")
        a.raw("PF_HERE:")
        a("v_lshlrev_b32 v34, 4, v0")
        a("v_cmp_gt_u32 vcc, CODE_END-PF_HERE-16, v34")
        a("s_and_saveexec_b64 s[56:57], vcc")
        a.branch("s_cbranch_execz PF_SKIP")
        a("global_load_dwordx4 v[36:39], v34, s[58:59]")
        a.label("PF_SKIP")
        a("s_mov_b64 exec, -1")
    a(f"s_cmp_eq_u32 s2, {P}")
    a.branch("s_cbranch_scc1 PREP_W")
    a("s_waitcnt lgkmcnt(0)")
    srd(a, 12, 6, 7, E * 4)
    srd(a, 16, 4, 5, E * 4)
    srd(a, 20, 8, 9, DESC_BYTES, WS_DESC)
    srd(a, 24, 8, 9, RECS_BYTES, WS_RECS)
    a(f"s_mul_i32 s3, s2, {C*4}")
    a("v_lshl_add_u32 v1, v0, 4, s3")
    a(f"v_cmp_gt_u32 vcc, {C//4}, v0")
    a("s_mov_b64 s[30:31], vcc")
    a(f"v_cmp_gt_u32 vcc, {NG//4}, v0")
    a("s_mov_b64 s[32:33], vcc")
    for k in range(4):
        a(f"v_mov_b32 v{40+k}, 0")
    a("v_lshlrev_b32 v2, 4, v0")
    a("s_mov_b64 exec, s[30:31]")
    a.branch("s_cbranch_execz PREP_A")
    a("buffer_load_dwordx4 v[4:7], v1, s[12:15], 0 offen")
    a("buffer_load_dwordx4 v[8:11], v1, s[16:19], 0 offen")
    a.label("PREP_A")
    PF = os.environ.get("PF", "")
    if PF:
        a("s_mov_b64 exec, -1")
        a("s_load_dwordx4 s[44:47], s[0:1], 0")
        a("s_waitcnt lgkmcnt(0)")
        srd(a, 48, 46, 47, E * 32)
        srd(a, 52, 44, 45, N * 128)
        a(f"s_mul_i32 s56, s2, {C*32}")
        a("v_lshl_add_u32 v33, v0, 4, s56")
        if "e" in PF:
            for k in range(7):
                a(f"s_mov_b32 s57, {k*16384}")
                a(f"buffer_load_dwordx4 v[36:39], v33, s[48:51], s57 offen")
        if "x" in PF:
            a(f"s_mul_i32 s56, s2, {N*128//P}")
            a("v_lshl_add_u32 v33, v0, 4, s56")
            for k in range(2):
                a(f"s_mov_b32 s57, {k*16384}")
                a(f"buffer_load_dwordx4 v[36:39], v33, s[52:55], s57 offen")
    a("s_mov_b64 exec, s[32:33]")
    a.branch("s_cbranch_execz PREP_A2")
    a("ds_write_b128 v2, v[40:43]")
    a.label("PREP_A2")
    a("s_mov_b64 exec, -1")
    a("s_waitcnt lgkmcnt(0)")
    a("s_barrier")
    a("s_mov_b64 exec, s[30:31]")
    a.branch("s_cbranch_execz PREP_B")
    a(f"s_mov_b32 s34, {MAGIC25}")
    a("v_mov_b32 v3, 1")
    a("s_waitcnt vmcnt(0)")
    for i in range(4):
        a(f"v_mul_hi_u32 v{12+i}, v{4+i}, s34")
    for i in range(4):
        a(f"v_mul_u32_u24 v{16+i}, {GN}, v{12+i}")
    for i in range(4):
        a(f"v_sub_u32 v{16+i}, v{4+i}, v{16+i}")
    for i in range(4):
        a(f"v_lshlrev_b32 v{12+i}, 2, v{12+i}")
    for i in range(4):
        a(f"ds_add_rtn_u32 v{20+i}, v{12+i}, v3")
    a(f"s_mul_i32 s35, s2, {C}")
    a("v_lshl_add_u32 v32, v0, 2, s35")
    for i in range(4):
        a(f"v_lshl_or_b32 v{24+2*i}, v{8+i}, 7, v{16+i}")
        a(f"v_lshrrev_b32 v33, 5, v{12+i}")
        a(f"v_lshl_or_b32 v{24+2*i}, v33, 23, v{24+2*i}")
        a(f"v_add_u32 v{25+2*i}, {i}, v32")
        a(f"v_bfe_u32 v33, v{12+i}, 2, 3")
        a(f"v_lshl_or_b32 v{25+2*i}, v{25+2*i}, 5, v33")
    a("s_waitcnt lgkmcnt(0)")
    a.label("PREP_B")
    a("s_mov_b64 exec, -1")
    a("s_barrier")
    a("s_mov_b64 exec, s[32:33]")
    a.branch("s_cbranch_execz PREP_C")
    a("ds_read_b128 v[40:43], v2")
    a("s_waitcnt lgkmcnt(0)")
    a.label("PREP_C")
    a("s_mov_b64 exec, -1")
    a("v_add_u32 v44, v40, v41")
    a("v_add_u32 v45, v44, v42")
    a("v_add_u32 v46, v45, v43")
    a("v_mov_b32 v47, v46")
    wave_scan(a, 47)
    a("v_lshrrev_b32 v48, 6, v0")
    a("v_and_b32 v49, 63, v0")
    a("v_readfirstlane_b32 s36, v48")
    a("v_lshlrev_b32 v50, 2, v48")
    a(f"v_add_u32 v50, {NG*4}, v50")
    a("v_cmp_eq_u32 vcc, 63, v49")
    a("s_and_saveexec_b64 s[38:39], vcc")
    a("ds_write_b32 v50, v47")
    a("s_mov_b64 exec, -1")
    a("s_waitcnt lgkmcnt(0)")
    a("s_barrier")
    a("v_and_b32 v51, 15, v49")
    a("v_lshlrev_b32 v50, 2, v51")
    a(f"v_add_u32 v50, {NG*4}, v50")
    a("ds_read_b32 v52, v50")
    a("v_cmp_gt_u32 vcc, s36, v51")
    a("s_waitcnt lgkmcnt(0)")
    a("v_cndmask_b32 v52, 0, v52, vcc")
    for sh in (1, 2, 4, 8):
        a(f"v_add_u32_dpp v52, v52, v52 row_shr:{sh} row_mask:0xf bank_mask:0xf bound_ctrl:0")
    a("v_readlane_b32 s37, v52, 15")
    a("v_sub_u32 v47, v47, v46")
    a("v_add_u32 v47, s37, v47")
    a("v_mov_b32 v56, v47")
    a("v_add_u32 v57, v47, v40")
    a("v_add_u32 v58, v47, v44")
    a("v_add_u32 v59, v47, v45")
    for i in range(4):
        a(f"v_lshl_or_b32 v{60+i}, v{40+i}, 16, v{56+i}")
    a("v_lshrrev_b32 v53, 1, v0")
    a(f"v_mul_u32_u24 v53, {P*32}, v53")
    a("v_and_b32 v54, 1, v0")
    a("v_lshl_add_u32 v53, v54, 4, v53")
    a("s_lshl_b32 s3, s2, 5")
    a("v_add_u32 v53, s3, v53")
    a("s_mov_b64 exec, s[32:33]")
    a.branch("s_cbranch_execz PREP_D")
    a("ds_write_b128 v2, v[56:59]")
    a("buffer_store_dwordx4 v[60:63], v53, s[20:23], 0 offen")
    a.label("PREP_D")
    a("s_mov_b64 exec, -1")
    a("s_waitcnt lgkmcnt(0)")
    a("s_barrier")
    a("s_mov_b64 exec, s[30:31]")
    a.branch("s_cbranch_execz PREP_E")
    for i in range(4):
        a(f"ds_read_b32 v{12+i}, v{12+i}")
    a("s_waitcnt lgkmcnt(0)")
    for i in range(4):
        a(f"v_add_u32 v{12+i}, v{12+i}, v{20+i}")
        a(f"v_lshlrev_b32 v{12+i}, 3, v{12+i}")
        a(f"ds_write_b64 v{12+i}, v[{24+2*i}:{25+2*i}] offset:{PL_STAGE}")
    a.label("PREP_E")
    a("s_mov_b64 exec, -1")
    a("s_waitcnt lgkmcnt(0)")
    a("s_barrier")
    srd(a, 40, 8, 9, SLOTS_BYTES, WS_SLOTS)
    a("v_lshlrev_b32 v2, 3, v0")
    for k in range(4):
        a(f"ds_read_b64 v[{24+2*k}:{25+2*k}], v2 offset:{PL_STAGE + k*8192}")
    a("s_waitcnt lgkmcnt(0)")
    for k in range(4):
        a(f"v_lshrrev_b32 v{12+k}, 23, v{24+2*k}")
        a(f"v_min_u32 v{12+k}, {NWG-1}, v{12+k}")
        a(f"v_lshlrev_b32 v{16+k}, 5, v{12+k}")
        a(f"ds_read_b32 v{16+k}, v{16+k}")
    a(f"s_mul_i32 s35, s2, {C}")
    a(f"s_lshl_b32 s36, s2, 5")
    a("s_waitcnt lgkmcnt(0)")
    a("s_mov_b64 s[44:45], 0")
    for k in range(4):
        a(f"v_add_u32 v20, {1024*k}, v0")
        a(f"v_sub_u32 v21, v20, v{16+k}")
        a(f"v_mul_u32_u24 v22, {P*SL}, v{12+k}")
        a(f"v_add3_u32 v22, v22, v21, s36")
        a(f"v_lshlrev_b32 v22, 3, v22")
        a(f"v_cmp_gt_u32 vcc, {C}, v20")
        a(f"s_mov_b64 s[46:47], vcc")
        a(f"v_cmp_gt_u32 vcc, {SL}, v21")
        a(f"s_and_b64 exec, vcc, s[46:47]")
        a(f"buffer_store_dwordx2 v[{24+2*k}:{25+2*k}], v22, s[40:43], 0 offen")
        a(f"s_andn2_b64 exec, s[46:47], vcc")
        a.branch(f"s_cbranch_execz PREP_NOVF{k}")
        a(f"v_add_u32 v22, s35, v20")
        a(f"v_lshlrev_b32 v22, 3, v22")
        a(f"buffer_store_dwordx2 v[{24+2*k}:{25+2*k}], v22, s[24:27], 0 offen")
        a.label(f"PREP_NOVF{k}")
        a("s_mov_b64 exec, -1")
    a.branch("s_branch PREP_END")

    a.label("PREP_W")
    a("s_load_dwordx4 s[12:15], s[0:1], 32")
    a("s_load_dwordx4 s[16:19], s[0:1], 48")
    a("s_load_dwordx2 s[20:21], s[0:1], 64")
    a("s_waitcnt lgkmcnt(0)")
    srd(a, 24, 8, 9, 65536)
    srd(a, 28, 12, 13, 8192)
    srd(a, 32, 14, 15, 8192)
    srd(a, 36, 16, 17, 2048)
    srd(a, 40, 18, 19, 8192)
    srd(a, 44, 20, 21, 8192)
    a("v_and_b32 v1, 31, v0")
    a("v_bfe_u32 v2, v0, 5, 1")
    a("v_bfe_u32 v3, v0, 6, 1")
    a("v_bfe_u32 v4, v0, 7, 2")
    a("v_lshlrev_b32 v5, 12, v2")
    a("v_lshl_add_u32 v5, v4, 10, v5")
    a("v_lshl_add_u32 v5, v1, 2, v5")
    a("v_lshl_add_u32 v5, v3, 1, v5")
    a("v_lshlrev_b32 v6, 4, v0")
    a("v_cmp_gt_u32 vcc, 512, v0")
    a("s_and_saveexec_b64 s[48:49], vcc")
    a.branch("s_cbranch_execz PREP_W2")
    mats = ((32, OFF_WB), (44, OFF_WV), (28, OFF_WA), (40, OFF_WU))
    for mi, (sd, off) in enumerate(mats):
        for j in range(8):
            a(f"buffer_load_ushort v{8+8*mi+j}, v5, s[{sd}:{sd+3}], 0 offen offset:{j*128}")
    a("v_mov_b32 v60, 0xbfb8aa3b")
    for mi, (sd, off) in enumerate(mats):
        a(f"s_waitcnt vmcnt({24-8*mi+mi})")
        for j in range(4):
            if FOLD and off == OFF_WB:
                a(f"v_lshlrev_b32 v{8+8*mi+2*j}, 16, v{8+8*mi+2*j}")
                a(f"v_lshlrev_b32 v{9+8*mi+2*j}, 16, v{9+8*mi+2*j}")
                a(f"v_mul_f32 v{8+8*mi+2*j}, v60, v{8+8*mi+2*j}")
                a(f"v_mul_f32 v{9+8*mi+2*j}, v60, v{9+8*mi+2*j}")
                a(f"v_cvt_pk_bf16_f32 v{40+4*mi+j}, v{8+8*mi+2*j}, v{9+8*mi+2*j}")
            else:
                a(f"v_lshl_or_b32 v{40+4*mi+j}, v{9+8*mi+2*j}, 16, v{8+8*mi+2*j}")
        a(f"s_mov_b32 s50, {off}")
        a(f"buffer_store_dwordx4 v[{40+4*mi}:{43+4*mi}], v6, s[24:27], s50 offen")
    a.label("PREP_W2")
    a("s_mov_b64 exec, -1")
    a("v_subrev_u32 v7, 512, v0")
    a("v_cmp_gt_u32 vcc, 128, v7")
    a("s_and_saveexec_b64 s[48:49], vcc")
    a.branch("s_cbranch_execz PREP_END")
    a("v_lshlrev_b32 v5, 10, v2")
    a("v_lshl_add_u32 v5, v1, 2, v5")
    a("v_lshl_add_u32 v5, v3, 1, v5")
    a("v_lshlrev_b32 v6, 4, v7")
    for j in range(8):
        a(f"buffer_load_ushort v{8+j}, v5, s[36:39], 0 offen offset:{j*128}")
    a("s_waitcnt vmcnt(0)")
    a("v_mov_b32 v60, 0xbfb8aa3b")
    for j in range(4):
        if FOLD:
            a(f"v_lshlrev_b32 v{8+2*j}, 16, v{8+2*j}")
            a(f"v_lshlrev_b32 v{9+2*j}, 16, v{9+2*j}")
            a(f"v_mul_f32 v{8+2*j}, v60, v{8+2*j}")
            a(f"v_mul_f32 v{9+2*j}, v60, v{9+2*j}")
            a(f"v_cvt_pk_bf16_f32 v{16+j}, v{8+2*j}, v{9+2*j}")
        else:
            a(f"v_lshl_or_b32 v{16+j}, v{9+2*j}, 16, v{8+2*j}")
    a(f"s_mov_b32 s50, {OFF_WC}")
    a("buffer_store_dwordx4 v[16:19], v6, s[24:27], s50 offen")
    a.label("PREP_END")
    if X2 == "tl":
        a("s_mov_b64 exec, -1")
        a("s_waitcnt vmcnt(0) lgkmcnt(0)")
        a("s_memrealtime s[62:63]")
        a("s_waitcnt lgkmcnt(0)")
        srd(a, 52, 8, 9, 65536, 128 << 20)
        a("v_lshrrev_b32 v1, 6, v0")
        a("s_lshl_b32 s56, s2, 7")
        a("v_lshl_add_u32 v1, v1, 3, s56")
        a("v_mov_b32 v2, s60")
        a("v_mov_b32 v3, s62")
        a("buffer_store_dwordx2 v[2:3], v1, s[52:55], 0 offen")
    a.label("PREP_END2")
    a("s_endpgm")
    return a.text()


NSLOT = QCAP + 128
L_AP = 0
L_REC = 8192
L_DL = L_REC + NSLOT * 8
L_MLO = L_DL + NSLOT * 4
L_MHI = L_MLO + NSLOT * 2
LDSW = L_MHI + NSLOT * 2
assert LDSW % 256 == 0, LDSW
L_DSC = 0
L_LENW = WPW * 1024
L_TJ = L_LENW + 1024
L_WBASE = L_TJ + 256
LDS_TOTAL = L_WBASE + WPW * LDSW
assert LDS_TOTAL <= 163840
INLOOP = [False]


def mfma32(a, d, x, y, c):
    if X2 == "nomfma" and INLOOP[0]:
        return
    a(f"v_mfma_f32_32x32x16_bf16 {vr(d,16)}, {vr(x,4)}, {vr(y,4)}, {c}")


def gen_main():
    a = Asm()
    R = VAlloc(0, 256)
    R.alloc("tid")
    vL = R.alloc("lane")
    vI = R.alloc("i")
    vH = R.alloc("h")
    vH64 = R.alloc("h64")
    vH16 = R.alloc("h16")
    vN4 = R.alloc("n4")
    vSh = R.alloc("sh")
    vRecA = R.alloc("recaddr")
    vDlA = R.alloc("dladdr")
    vMkA = R.alloc("maskaddr")
    vK = R.alloc("K")
    RC = R.alloc("RC", 2, 2)
    vM1 = R.alloc("m10001")
    vB1 = R.alloc("b3f80")
    WB = R.alloc("WB", 32, 4)
    WV = R.alloc("WV", 32, 4)
    WC = R.alloc("WC", 8, 4)
    DEN = R.alloc("DEN", 32, 4)
    NUM = R.alloc("NUM", 32, 4)
    G = R.alloc("G", 16, 4)
    H = R.alloc("H", 16, 4)
    G1 = R.alloc("G1", 16, 4)
    AD = H
    OH = R.alloc("OH", 8, 4)
    GB = R.alloc("GB", 40, 4)
    vMX = R.alloc("maskx")
    vME = R.alloc("maske")
    print("vgprs used:", R.next, file=sys.stderr)

    SX, SEA, SW, SD, SR_, SO, SS = 8, 12, 16, 20, 24, 28, 56
    s_wv, s_G, s_ns, s_T, s_R, s_NS, s_lds, s_tmp, s_Tn, s_mx, s_q, s_lw = 36, 37, 38, 40, 41, 42, 43, 45, 46, 47, 48, 49

    def ps(k):
        if X2 == "pro":
            a(f"s_memtime s[{60+2*k}:{61+2*k}]")
            a("s_waitcnt lgkmcnt(0)")

    a.raw(".globl main_kernel\n.p2align 8\n.type main_kernel,@function\nmain_kernel:")
    a(f"s_cmp_ge_u32 s2, {NWG}")
    a.branch("s_cbranch_scc1 MAIN_END")
    ps(0)
    if X2 == "tl":
        a("s_memrealtime s[60:61]")
    a("s_load_dwordx4 s[4:7], s[0:1], 0")
    a("s_load_dwordx2 s[32:33], s[0:1], 72")
    a("s_load_dwordx2 s[34:35], s[0:1], 88")
    a(f"v_lshrrev_b32 v{vL}, 6, v0")
    a(f"v_readfirstlane_b32 s{s_wv}, v{vL}")
    a(f"v_and_b32 v{vL}, 63, v0")
    a(f"v_and_b32 v{vI}, 31, v0")
    a(f"v_bfe_u32 v{vH}, v0, 5, 1")
    a(f"v_lshlrev_b32 v{vH64}, 6, v{vH}")
    a(f"v_lshlrev_b32 v{vH16}, 4, v{vH}")
    a(f"v_and_b32 v{vSh}, 15, v0")
    a(f"s_lshl_b32 s{s_G}, s2, 3")
    a(f"s_add_u32 s{s_G}, s{s_G}, s{s_wv}")
    a(f"s_mul_i32 s{s_ns}, s{s_G}, {GN}")
    a(f"s_mul_i32 s{s_lds}, s{s_wv}, {LDSW}")
    a(f"s_add_u32 s{s_lds}, s{s_lds}, {L_WBASE}")
    a(f"s_mov_b32 s{s_q}, {QCAP}")
    a(f"s_mov_b32 s{s_lw}, {LDSW}")
    a(f"v_mov_b32 v{vK}, 0xbfb8aa3b")
    a(f"v_mov_b32 v{vM1}, 0x10001")
    a(f"v_mov_b32 v{vB1}, 0x3f80")
    a(f"v_mov_b32 v{vMX}, 0x007fff80")
    a(f"v_mov_b32 v{vME}, 0xffffffe0")
    a(f"v_lshlrev_b32 v{vN4}, 2, v{vI}")
    a(f"v_add_u32 v{vN4}, s{s_lds}, v{vN4}")
    a("s_waitcnt lgkmcnt(0)")
    srd(a, SD, 34, 35, DESC_BYTES, WS_DESC)
    srd(a, SW, 34, 35, OFF_WC + 2048)
    srd(a, SS, 34, 35, SLOTS_BYTES, WS_SLOTS)
    SLT = GB
    vtmp = GB + 32
    vD = G
    WS0 = H
    a(f"s_mul_i32 s{s_tmp}, s2, {P*32}")
    a(f"v_lshl_add_u32 v{vtmp}, v0, 5, s{s_tmp}")
    a(f"v_mov_b32 v{vtmp+3}, {BIG}")
    a(f"v_cmp_gt_u32 vcc, {P}, v0")
    a(f"v_cndmask_b32 v{vtmp}, v{vtmp+3}, v{vtmp}, vcc")
    a(f"buffer_load_dwordx4 {vr(vD,4)}, v{vtmp}, s[{SD}:{SD+3}], 0 offen")
    a(f"buffer_load_dwordx4 {vr(vD+4,4)}, v{vtmp}, s[{SD}:{SD+3}], 0 offen offset:16")
    a(f"v_lshlrev_b32 v{vtmp+2}, 4, v0")
    for k in range(4):
        a(f"s_mov_b32 s{s_tmp}, {k*8192}")
        a(f"buffer_load_dwordx4 {vr(WS0+4*k,4)}, v{vtmp+2}, s[{SW}:{SW+3}], s{s_tmp} offen")

    def slot_addr():
        a(f"v_lshrrev_b32 v{vtmp+2}, 3, v0")
        a(f"v_lshlrev_b32 v{vtmp+2}, 8, v{vtmp+2}")
        a(f"v_and_b32 v{vtmp+3}, 7, v0")
        a(f"v_lshl_add_u32 v{vtmp+2}, v{vtmp+3}, 4, v{vtmp+2}")

    def load_slots():
        slot_addr()
        for k in range(4):
            a(f"s_mul_i32 s{s_tmp}, s2, {P*SL*8}")
            a(f"s_add_u32 s{s_tmp}, s{s_tmp}, {k*16384}")
            a(f"buffer_load_dwordx4 {vr(SLT+4*k,4)}, v{vtmp+2}, s[{SS}:{SS+3}], s{s_tmp} offen")

    srd(a, SX, 4, 5, N * 128)
    srd(a, SEA, 6, 7, E * 32)
    srd(a, SW, 34, 35, 65536)
    srd(a, SR_, 34, 35, RECS_BYTES, WS_RECS)
    srd(a, SO, 32, 33, N * 128)
    for k in range(32):
        a(f"v_mov_b32 v{DEN+k}, 0")
    a("s_waitcnt vmcnt(4)")
    a(f"v_lshlrev_b32 v{vtmp}, 2, v0")
    a(f"v_lshrrev_b32 v{vtmp+4}, 16, v{vD}")
    for j in range(1, 8):
        a(f"v_lshrrev_b32 v{vtmp+5}, 16, v{vD+j}")
        a(f"v_add_u32 v{vtmp+4}, v{vtmp+4}, v{vtmp+5}")
    a(f"v_lshl_or_b32 v{vtmp+4}, v{vD}, 16, v{vtmp+4}")
    a(f"v_cmp_gt_u32 vcc, 256, v0")
    a("s_and_saveexec_b64 s[52:53], vcc")
    a.branch("s_cbranch_execz DSC_SKIP")
    for j in range(WPW):
        a(f"ds_write_b32 v{vtmp}, v{vD+j} offset:{L_DSC + j*1024}")
    a(f"ds_write_b32 v{vtmp}, v{vtmp+4} offset:{L_LENW}")
    a.label("DSC_SKIP")
    a("s_mov_b64 exec, -1")
    a("s_waitcnt vmcnt(0)")
    for k in range(4):
        if k == 3:
            a(f"v_cmp_gt_u32 vcc, 128, v0")
            a("s_and_saveexec_b64 s[52:53], vcc")
            a.branch("s_cbranch_execz WST_SKIP")
        a(f"ds_write_b128 v{vtmp+2}, {vr(WS0+4*k,4)} offset:{L_WBASE + k*LDSW + L_AP if k < 3 else L_WBASE + L_REC}")
    a.label("WST_SKIP")
    a("s_mov_b64 exec, -1")
    a("s_waitcnt lgkmcnt(0)")
    a("s_barrier")
    ps(1)
    load_slots()
    WAt = NUM
    XO = G
    vC = G1
    vS = G1 + 4
    vLw = G1 + 8
    vTot = G1 + 12
    vInc = G1 + 13
    vB = OH
    a(f"s_lshl_b32 s{s_tmp}, s{s_wv}, 10")
    a(f"v_lshl_add_u32 v{vtmp}, v{vL}, 2, s{s_tmp}")
    a(f"v_lshlrev_b32 v{vtmp+1}, 2, v{vL}")
    for k in range(4):
        a(f"ds_read_b32 v{vD+k}, v{vtmp} offset:{L_DSC + k*256}")
    for k in range(4):
        a(f"ds_read_b32 v{vLw+k}, v{vtmp+1} offset:{L_LENW + k*256}")
    a(f"v_lshlrev_b32 v{vtmp+2}, 4, v{vL}")
    for (base, off) in ((WAt, OFF_WA), (WB, OFF_WB), (WV, OFF_WV)):
        for k in range(8):
            a(f"ds_read_b128 {vr(base+4*k,4)}, v{vtmp+2} offset:{L_WBASE + (off//8192)*LDSW + L_AP + k*1024}")
    for c in range(2):
        a(f"ds_read_b128 {vr(WC+4*c,4)}, v{vtmp+2} offset:{L_WBASE + L_REC + c*1024}")
    a("s_waitcnt lgkmcnt(15)")
    for k in range(4):
        a(f"v_lshrrev_b32 v{vC+k}, 16, v{vD+k}")
        a(f"v_and_b32 v{vS+k}, 0xffff, v{vD+k}")
    a(f"v_add_u32 v{vTot}, v{vC}, v{vC+1}")
    a(f"v_add3_u32 v{vTot}, v{vTot}, v{vC+2}, v{vC+3}")
    a(f"v_mov_b32 v{vInc}, v{vTot}")
    wave_scan(a, vInc)
    a(f"v_readlane_b32 s{s_T}, v{vInc}, 63")
    a(f"v_sub_u32 v{vB}, v{vInc}, v{vTot}")
    a(f"v_add_u32 v{vB+1}, v{vB}, v{vC}")
    a(f"v_add_u32 v{vB+2}, v{vB+1}, v{vC+1}")
    a(f"v_add_u32 v{vB+3}, v{vB+2}, v{vC+2}")
    for k in range(4):
        a(f"v_lshrrev_b32 v{vLw+k}, 16, v{vLw+k}")
        a(f"v_sub_u32 v{vB+k}, v{vB+k}, v{vS+k}")
        a(f"v_add_u32 v{vB+k}, v{vB+k}, v{vLw+k}")
        a(f"ds_write_b32 v{vtmp}, v{vB+k} offset:{L_DSC + k*256}")
    a(f"v_mov_b32 v{vTot}, s{s_T}")
    a(f"s_lshl_b32 s{s_tmp}, s{s_wv}, 2")
    a(f"v_mov_b32 v{vInc}, s{s_tmp}")
    a(f"ds_write_b32 v{vInc}, v{vTot} offset:{L_TJ}")
    a("s_waitcnt lgkmcnt(0)")
    a("s_barrier")
    ps(2)
    a(f"v_mov_b32 v{vInc}, 0")
    a(f"ds_read_b128 {vr(G1,4)}, v{vInc} offset:{L_TJ}")
    a(f"ds_read_b128 {vr(G1+4,4)}, v{vInc} offset:{L_TJ+16}")
    a("s_waitcnt lgkmcnt(0)")
    a(f"v_max3_u32 v{G1}, v{G1}, v{G1+1}, v{G1+2}")
    a(f"v_max3_u32 v{G1}, v{G1}, v{G1+3}, v{G1+4}")
    a(f"v_max3_u32 v{G1}, v{G1}, v{G1+5}, v{G1+6}")
    a(f"v_max_u32 v{G1}, v{G1}, v{G1+7}")
    a(f"v_readfirstlane_b32 s{s_mx}, v{G1}")
    a(f"s_mov_b32 s{s_R}, 0")

    a.label("ROUND")
    a(f"s_sub_u32 s{s_Tn}, s{s_T}, s{s_R}")
    a(f"s_cselect_b32 s{s_Tn}, 0, s{s_Tn}")
    a(f"s_min_u32 s{s_Tn}, s{s_Tn}, {QCAP}")
    vt = H
    vi, vad, vval, vdum = vt, vt + 1, vt + 2, vt + 4
    a(f"v_mov_b32 v{vdum}, 0x007fff80")
    a(f"v_mov_b32 v{vdum+1}, {BIG}")
    a(f"v_add_u32 v{vi}, s{s_Tn}, v{vL}")
    a(f"v_lshl_add_u32 v{vad}, v{vi}, 3, s{s_lds}")
    a(f"ds_write_b64 v{vad}, {vr(vdum,2)} offset:{L_REC}")
    a(f"ds_write_b64 v{vad}, {vr(vdum,2)} offset:{L_REC+512}")
    a(f"v_lshl_add_u32 v{vad}, v{vi}, 2, s{s_lds}")
    a(f"v_mov_b32 v{vval}, {31*256}")
    a(f"ds_write_b32 v{vad}, v{vval} offset:{L_DL}")
    a(f"ds_write_b32 v{vad}, v{vval} offset:{L_DL+256}")
    a(f"v_lshl_add_u32 v{vad}, v{vi}, 1, s{s_lds}")
    a(f"v_mov_b32 v{vval}, 0")
    a(f"ds_write_b16 v{vad}, v{vval} offset:{L_MLO}")
    a(f"ds_write_b16 v{vad}, v{vval} offset:{L_MLO+128}")
    a(f"ds_write_b16 v{vad}, v{vval} offset:{L_MHI}")
    a(f"ds_write_b16 v{vad}, v{vval} offset:{L_MHI+128}")
    vT4 = vt + 6
    vS0 = vt + 7
    vSR0 = vt + 8
    vLen = G1
    vDl = OH
    vj, vpos, vwb, va = vt + 9, vt + 10, vt + 11, vt + 15
    vLDSW = vt + 3
    vS1 = RC
    vSR1 = RC + 1
    a(f"v_lshrrev_b32 v{vT4}, 3, v0")
    a(f"v_lshlrev_b32 v{vT4}, 2, v{vT4}")
    a(f"v_and_b32 v{vS0}, 7, v0")
    a(f"v_lshlrev_b32 v{vS0}, 1, v{vS0}")
    for k in range(4):
        a(f"ds_read_b32 v{vLen+k}, v{vT4} offset:{L_LENW + k*256}")
    a(f"v_mov_b32 v{vLDSW}, {LDSW}")
    slot_addr()
    a(f"v_mov_b32 v{vtmp+3}, {BIG}")
    a(f"v_add_u32 v{vS1}, 16, v{vS0}")
    a("s_waitcnt lgkmcnt(0)")
    for k in range(4):
        a(f"v_and_b32 v{vLen+k}, 0xffff, v{vLen+k}")
    for k in range(4):
        a(f"v_cmp_lt_u32 vcc, v{vS1}, v{vLen+k}")
        a(f"v_cndmask_b32 v{vtmp+4+k}, v{vtmp+3}, v{vtmp+2}, vcc")
        a(f"s_mul_i32 s{s_tmp}, s2, {P*SL*8}")
        a(f"s_add_u32 s{s_tmp}, s{s_tmp}, {k*16384 + 128}")
        a(f"buffer_load_dwordx4 {vr(SLT+16+4*k,4)}, v{vtmp+4+k}, s[{SS}:{SS+3}], s{s_tmp} offen")

    def scatter(w0, w1, vdelta, vsr, valid_cmp):
        a(f"v_add_u32 v{vpos}, v{vdelta}, v{vsr}")
        a(f"v_and_b32 v{vj}, 7, v{w1}")
        a(f"v_mul_u32_u24 v{vwb}, v{vj}, v{vLDSW}")
        valid_cmp()
        a(f"v_cmp_gt_u32 s[52:53], s{s_q}, v{vpos}")
        a(f"v_lshl_add_u32 v{va}, v{vpos}, 3, v{vwb}")
        a(f"s_and_b64 exec, vcc, s[52:53]")
        a(f"ds_write_b64 v{va}, v[{w0}:{w1}] offset:{L_WBASE + L_REC}")
        a("s_mov_b64 exec, -1")

    for lvl in range(2):
        a(f"s_waitcnt vmcnt(4)")
        if lvl == 1:
            a(f"s_cmp_eq_u32 s{s_R}, 0")
            a.branch("s_cbranch_scc1 L2_OK")
            a("s_waitcnt vmcnt(0)")
            a.label("L2_OK")
        if lvl == 0:
            ps(3)
        a(f"v_add_u32 v{vS1}, 1, v{vS0}")
        a(f"v_subrev_u32 v{vSR0}, s{s_R}, v{vS0}")
        a(f"v_add_u32 v{vSR1}, 1, v{vSR0}")
        for k in range(4):
            for e in range(2):
                w1 = SLT + 16 * lvl + 4 * k + 2 * e + 1
                a(f"v_and_b32 v{vj}, 7, v{w1}")
                a(f"v_lshl_add_u32 v{va}, v{vj}, 10, v{vT4}")
                a(f"ds_read_b32 v{vDl+2*k+e}, v{va} offset:{L_DSC + k*256}")
        a("s_waitcnt lgkmcnt(0)")
        for k in range(4):
            for e in range(2):
                w0 = SLT + 16 * lvl + 4 * k + 2 * e
                scatter(w0, w0 + 1, vDl + 2 * k + e, vSR0 if e == 0 else vSR1,
                        lambda k=k, e=e: a(f"v_cmp_lt_u32 vcc, v{vS0 if e == 0 else vS1}, v{vLen+k}"))
        if lvl == 0:
            a(f"v_add_u32 v{vS0}, 16, v{vS0}")
            XO = GB
            a(f"s_cmp_lg_u32 s{s_R}, 0")
            a.branch("s_cbranch_scc1 XO_SKIP")
            a(f"v_add_u32 v{va}, s{s_ns}, v{vI}")
            a(f"v_lshl_add_u32 v{va}, v{va}, 7, v{vH64}")
            for s in range(4):
                a(f"buffer_load_dwordx4 {vr(XO+4*s,4)}, v{va}, s[{SX}:{SX+3}], 0 offen offset:{16*s}")
            a.label("XO_SKIP")
    vo_len, vo_s, vo_base = G1, G1 + 1, G1 + 2
    vo_rec = G1 + 4
    vo_d, vo_sr = G1 + 6, G1 + 7
    a(f"v_lshlrev_b32 v{vad}, 2, v0")
    a(f"v_and_b32 v{vad}, 0x3ff, v{vad}")
    a(f"ds_read_b32 v{vo_len}, v{vad} offset:{L_LENW}")
    a("s_waitcnt lgkmcnt(0)")
    a(f"v_lshrrev_b32 v{vo_base}, 16, v{vo_len}")
    a(f"v_and_b32 v{vo_len}, 0xffff, v{vo_len}")
    a(f"v_cmp_gt_u32 vcc, 256, v0")
    a(f"v_cndmask_b32 v{vo_len}, 0, v{vo_len}, vcc")
    a(f"v_mul_u32_u24 v{vo_s}, {C}, v0")
    a(f"v_add_u32 v{vo_base}, v{vo_base}, v{vo_s}")
    a(f"v_mov_b32 v{vo_s}, {SL}")
    a.label("OVF")
    a(f"v_cmp_lt_u32 vcc, v{vo_s}, v{vo_len}")
    a("s_nop 1")
    a("s_cbranch_vccz OVF_DONE")
    a(f"v_add_u32 v{vo_d}, v{vo_base}, v{vo_s}")
    a(f"v_lshlrev_b32 v{vo_d}, 3, v{vo_d}")
    a(f"v_mov_b32 v{vo_sr}, {BIG}")
    a(f"v_cndmask_b32 v{vo_d}, v{vo_sr}, v{vo_d}, vcc")
    a(f"buffer_load_dwordx2 {vr(vo_rec,2)}, v{vo_d}, s[{SR_}:{SR_+3}], 0 offen")
    a("s_waitcnt vmcnt(0)")
    a(f"v_and_b32 v{vj}, 7, v{vo_rec+1}")
    a(f"v_lshl_add_u32 v{va}, v{vj}, 10, v{vad}")
    a(f"ds_read_b32 v{vo_d}, v{va} offset:{L_DSC}")
    a(f"v_subrev_u32 v{vo_sr}, s{s_R}, v{vo_s}")
    a("s_waitcnt lgkmcnt(0)")
    scatter(vo_rec, vo_rec + 1, vo_d, vo_sr, lambda: a(f"v_cmp_lt_u32 vcc, v{vo_s}, v{vo_len}"))
    a(f"v_add_u32 v{vo_s}, 1, v{vo_s}")
    a.branch("s_branch OVF")
    a.label("OVF_DONE")
    ps(4)
    a("s_waitcnt lgkmcnt(0)")
    a("s_barrier")
    ps(5)
    NM = QCAP // 64
    a(f"v_lshl_add_u32 v{RC}, v{vL}, 3, s{s_lds}")
    for m in range(NM):
        a(f"ds_read_b32 v{G+m}, v{RC} offset:{L_REC + m*512}")
    a(f"v_lshl_add_u32 v{G1}, v{vL}, 2, s{s_lds}")
    a(f"v_lshl_add_u32 v{G1+1}, v{vL}, 1, s{s_lds}")
    a("s_waitcnt lgkmcnt(0)")
    for m in range(NM):
        a(f"v_add_u32 v{G1+2}, {64*m}, v{vL}")
        a(f"v_cmp_gt_u32 vcc, s{s_Tn}, v{G1+2}")
        a(f"s_and_b64 exec, exec, vcc")
        a.branch(f"s_cbranch_execz DRV_DONE")
        a(f"v_and_b32 v{G+m}, 31, v{G+m}")
        a(f"v_lshlrev_b32 v{G1+3}, v{G+m}, 1")
        a(f"v_lshrrev_b32 v{G1+4}, 16, v{G1+3}")
        a(f"v_lshlrev_b32 v{G+m}, 8, v{G+m}")
        a(f"ds_write_b32 v{G1}, v{G+m} offset:{L_DL + m*256}")
        a(f"ds_write_b16 v{G1+1}, v{G1+3} offset:{L_MLO + m*128}")
        a(f"ds_write_b16 v{G1+1}, v{G1+4} offset:{L_MHI + m*128}")
    a.label("DRV_DONE")
    a("s_mov_b64 exec, -1")
    ps(6)
    a(f"s_add_u32 s{s_NS}, s{s_Tn}, 31")
    a(f"s_lshr_b32 s{s_NS}, s{s_NS}, 5")
    a(f"v_lshl_add_u32 v{vRecA}, v{vI}, 3, s{s_lds}")
    a(f"v_lshl_add_u32 v{vDlA}, v{vH}, 4, s{s_lds}")
    a(f"v_bfe_u32 v{RC}, v{vI}, 4, 1")
    a(f"v_mul_u32_u24 v{RC}, {L_MHI-L_MLO}, v{RC}")
    a(f"v_lshl_add_u32 v{vMkA}, v{vH}, 3, s{s_lds}")
    a(f"v_add_u32 v{vMkA}, v{vMkA}, v{RC}")

    def gathers(b):
        base = GB + 20 * b
        a(f"v_and_or_b32 v{RC}, v{RC}, v{vMX}, v{vH64}")
        a(f"v_and_or_b32 v{RC+1}, v{RC+1}, v{vME}, v{vH16}")
        for s in range(4):
            a(f"buffer_load_dwordx4 {vr(base+4*s,4)}, v{RC}, s[{SX}:{SX+3}], 0 offen offset:{16*s}")
        a(f"buffer_load_dwordx4 {vr(base+16,4)}, v{RC+1}, s[{SEA}:{SEA+3}], 0 offen nt")

    a(f"ds_read_b64 {vr(RC,2)}, v{vRecA} offset:{L_REC}")
    a("s_waitcnt lgkmcnt(0)")
    gathers(1)
    a(f"s_cmp_lg_u32 s{s_R}, 0")
    a.branch("s_cbranch_scc1 AP_DONE")
    a("s_waitcnt vmcnt(5)")
    a(f"v_lshl_add_u32 v{RC}, v{vH}, 10, v{vN4}")
    for c in range(2):
        d = H if c == 0 else G1
        for s in range(4):
            mfma32(a, d, XO + 4 * s, WAt + 4 * (2 * s + c), "0" if s == 0 else vr(d, 16))
    for c in range(2):
        d = H if c == 0 else G1
        for r in range(16):
            row = 8 * (r >> 2) + (r & 3)
            if FOLD:
                a(f"v_mul_f32 v{d+r}, v{vK}, v{d+r}")
            a(f"ds_write_b32 v{RC}, v{d+r} offset:{L_AP + row*256 + c*128}")
    for k in range(32):
        a(f"v_mov_b32 v{NUM+k}, 0")
    a.label("AP_DONE")
    ps(7)
    a(f"s_cmp_eq_u32 s{s_NS}, 0")
    a.branch("s_cbranch_scc1 LOOP_DONE")
    if EXP == "noloop":
        a.branch("s_branch EPILOGUE")
    if EXP in ("nogather", "noea"):
        a(f"s_mov_b32 s{SEA+2}, 0")
    if EXP in ("nogather", "nox"):
        a(f"s_mov_b32 s{SX+2}, 0")

    def merge(valu, mf, first_gap=0):
        n, m = len(valu), len(mf)
        pos = [first_gap + (k * (n - first_gap)) // max(m, 1) for k in range(m)]
        k = 0
        for idx, ins in enumerate(valu):
            while k < m and pos[k] <= idx:
                mf[k]()
                k += 1
            a(ins)
        while k < m:
            mf[k]()
            k += 1

    def valu_g(g):
        L = []
        for r in range(16):
            if not FOLD:
                L.append(f"v_mul_f32 v{g+r}, v{vK}, v{g+r}")
        for r in range(16):
            L.append(f"v_exp_f32 v{g+r}, v{g+r}")
        for r in range(16):
            L.append(f"v_add_f32 v{g+r}, 1.0, v{g+r}")
        for r in range(16):
            L.append(f"v_rcp_f32 v{g+r}, v{g+r}")
        return L

    def pc(g):
        for r in range(16):
            a(f"v_mul_f32 v{H+r}, v{H+r}, v{g+r}")
        for j in range(8):
            a(f"v_cvt_pk_bf16_f32 v{g+j}, v{g+2*j}, v{g+2*j+1}")
        for j in range(8):
            a(f"v_cvt_pk_bf16_f32 v{H+j}, v{H+2*j}, v{H+2*j+1}")

    def gchain(b, c, g):
        base = GB + 20 * b
        L = [(lambda s=s: mfma32(a, g, base + 4 * s, WB + 4 * (2 * s + c), vr(g, 16))) for s in range(4)]
        L.append(lambda: mfma32(a, g, base + 16, WC + 4 * c, vr(g, 16)))
        return L

    def hchain(b, c):
        base = GB + 20 * b
        return [(lambda s=s: mfma32(a, H, base + 4 * s, WV + 4 * (2 * s + c), "0" if s == 0 else vr(H, 16))) for s in range(4)]

    def rchain(c, g):
        L = []
        for s in range(2):
            L.append(lambda s=s: mfma32(a, DEN + 16 * c, OH + 4 * s, g + 4 * s, vr(DEN + 16 * c, 16)))
            L.append(lambda s=s: mfma32(a, NUM + 16 * c, OH + 4 * s, H + 4 * s, vr(NUM + 16 * c, 16)))
        return L

    def step(b):
        a(f"ds_read_b64 {vr(RC,2)}, v{vRecA} offset:{L_REC + 256}")
        for q in range(4):
            a(f"ds_read_b128 {vr(AD+4*q,4)}, v{vDlA} offset:{L_DL + q*32}")
        for q in range(4):
            a(f"ds_read_b64 {vr(OH+2*q,2)}, v{vMkA} offset:{L_MLO + q*16}")
        a("s_waitcnt lgkmcnt(8)")
        gathers(1 - b)
        a("s_waitcnt lgkmcnt(4)")
        for k in range(16):
            a(f"v_add_u32 v{AD+k}, v{AD+k}, v{vN4}")
        for r in range(16):
            a(f"ds_read_b32 v{G+r}, v{AD+r} offset:{L_AP}")
        for r in range(16):
            a(f"ds_read_b32 v{G1+r}, v{AD+r} offset:{L_AP + 128}")
        a("s_waitcnt vmcnt(5) lgkmcnt(15)")
        ohl = []
        for k in range(8):
            ohl.append(f"v_lshrrev_b32 v{OH+k}, v{vSh}, v{OH+k}")
        for k in range(8):
            ohl.append(f"v_and_b32 v{OH+k}, v{vM1}, v{OH+k}")
        for k in range(8):
            ohl.append(f"v_mul_u32_u24 v{OH+k}, v{vB1}, v{OH+k}")
        ohl.append(f"v_add_u32 v{vRecA}, 256, v{vRecA}")
        ohl.append(f"v_add_u32 v{vDlA}, 128, v{vDlA}")
        ohl.append(f"v_add_u32 v{vMkA}, 64, v{vMkA}")
        merge(ohl, gchain(b, 0, G))
        a("s_waitcnt lgkmcnt(0)")
        merge(valu_g(G), hchain(b, 0) + gchain(b, 1, G1))
        pc(G)
        merge(valu_g(G1), rchain(0, G) + hchain(b, 1))
        pc(G1)
        for f in rchain(1, G1):
            f()

    a.label("LOOP")
    INLOOP[0] = True
    for b in (1, 0):
        step(b)
        a(f"s_sub_u32 s{s_NS}, s{s_NS}, 1")
        a(f"s_cmp_eq_u32 s{s_NS}, 0")
        if b == 1:
            a.branch("s_cbranch_scc1 LOOP_DONE")
        else:
            a.branch("s_cbranch_scc0 LOOP")
    a.label("LOOP_DONE")
    INLOOP[0] = False
    a("s_waitcnt vmcnt(0) lgkmcnt(0)")
    a(f"s_add_u32 s{s_R}, s{s_R}, {QCAP}")
    a(f"s_cmp_ge_u32 s{s_R}, s{s_mx}")
    a.branch("s_cbranch_scc1 EPILOGUE")
    a("s_barrier")
    load_slots()
    a("s_waitcnt vmcnt(0)")
    a.branch("s_branch ROUND")

    a.label("EPILOGUE")
    a("s_waitcnt vmcnt(0) lgkmcnt(0)")
    if EXP in ("nogather", "nox"):
        a(f"s_mov_b32 s{SX+2}, {N*128}")
    WUt = WB
    XD = WV
    VO = WV + 16
    XO = GB
    a(f"v_lshlrev_b32 v{vtmp+2}, 4, v{vL}")
    for k in range(8):
        if k % 4 == 0:
            a(f"s_mov_b32 s{s_tmp}, {OFF_WU + k*1024}")
        a(f"buffer_load_dwordx4 {vr(WUt+4*k,4)}, v{vtmp+2}, s[{SW}:{SW+3}], s{s_tmp} offen offset:{(k%4)*1024}")
    a(f"v_add_u32 v{vtmp+1}, s{s_ns}, v{vI}")
    a(f"v_lshl_add_u32 v{vtmp+1}, v{vtmp+1}, 7, v{vH64}")
    for s in range(4):
        a(f"buffer_load_dwordx4 {vr(XO+4*s,4)}, v{vtmp+1}, s[{SX}:{SX+3}], 0 offen offset:{16*s}")
    a(f"v_lshl_add_u32 v{vtmp}, v{vH}, 2, s{s_ns}")
    a(f"v_lshlrev_b32 v{vtmp}, 7, v{vtmp}")
    a(f"v_lshl_add_u32 v{vtmp}, v{vI}, 2, v{vtmp}")
    for r in range(16):
        row = 8 * (r >> 2) + (r & 3)
        a(f"buffer_load_dword v{XD+r}, v{vtmp}, s[{SX}:{SX+3}], 0 offen offset:{row*128}")
    a(f"v_mov_b32 v{vtmp+3}, {BIG}")
    a(f"v_lshlrev_b32 v{vtmp+1}, 2, v{vH}")
    for r in range(16):
        row = 8 * (r >> 2) + (r & 3)
        a(f"v_cmp_gt_u32 vcc, {GN-row if GN-row>0 else 0}, v{vtmp+1}")
        a(f"v_add_u32 v{VO+r}, {row*128}, v{vtmp}")
        a(f"v_cndmask_b32 v{VO+r}, v{vtmp+3}, v{VO+r}, vcc")
    a(f"v_mov_b32 v{vtmp+3}, 0x358637bd")
    for k in range(32):
        a(f"v_add_f32 v{DEN+k}, v{vtmp+3}, v{DEN+k}")
    for k in range(32):
        a(f"v_rcp_f32 v{DEN+k}, v{DEN+k}")
    a("s_waitcnt vmcnt(16)")
    for c in range(2):
        d = G if c == 0 else H
        for s in range(4):
            mfma32(a, d, XO + 4 * s, WUt + 4 * (2 * s + c), "0" if s == 0 else vr(d, 16))
    for c in range(2):
        d = G if c == 0 else H
        for r in range(16):
            a(f"v_fma_f32 v{d+r}, v{NUM+16*c+r}, v{DEN+16*c+r}, v{d+r}")
        for r in range(16):
            a(f"v_max_f32 v{d+r}, 0, v{d+r}")
    a("s_waitcnt vmcnt(0)")
    for r in range(16):
        a(f"v_lshlrev_b32 v{G1}, 16, v{XD+r}")
        a(f"v_and_b32 v{G1+1}, 0xffff0000, v{XD+r}")
        a(f"v_add_f32 v{G1}, v{G1}, v{G+r}")
        a(f"v_add_f32 v{G1+1}, v{G1+1}, v{H+r}")
        a(f"v_cvt_pk_bf16_f32 v{XD+r}, v{G1}, v{G1+1}")
        a(f"buffer_store_dword v{XD+r}, v{VO+r}, s[{SO}:{SO+3}], 0 offen")
    if X2 == "tl":
        a("s_waitcnt vmcnt(0) lgkmcnt(0)")
        a("s_memrealtime s[62:63]")
        a("s_waitcnt lgkmcnt(0)")
        srd(a, 52, 34, 35, 65536, (128 << 20) + 65536)
        a(f"s_lshl_b32 s{s_tmp}, s{s_G}, 3")
        a(f"v_mov_b32 v1, s{s_tmp}")
        a("v_mov_b32 v2, s60")
        a("v_mov_b32 v3, s62")
        a("buffer_store_dwordx2 v[2:3], v1, s[52:55], 0 offen")
    if X2 == "pro":
        a(f"s_lshr_b32 s84, s{s_G}, 3")
        a(f"s_cmp_lg_u32 s84, 37")
        a.branch("s_cbranch_scc1 MAIN_END")
        a("s_load_dwordx2 s[80:81], s[0:1], 80")
        a("s_waitcnt lgkmcnt(0)")
        a("s_mov_b32 s82, 256")
        a("s_mov_b32 s83, 0x00020000")
        a(f"s_lshl_b32 s85, s{s_wv}, 5")
        for k in range(7):
            a(f"s_sub_u32 s84, s{62+2*k}, s60")
            a(f"v_mov_b32 v{RC}, s84")
            a(f"v_mov_b32 v{RC+1}, {4*k}")
            a(f"buffer_store_dword v{RC}, v{RC+1}, s[80:83], s85 offen")
        a("s_waitcnt vmcnt(0)")
    a.label("MAIN_END")
    a("s_endpgm")
    a.raw("CODE_END:")
    return a.text()


def kd(name, vgpr, sgpr):
    acc = (vgpr + 3) // 4 * 4
    return f""".amdhsa_kernel {name}
  .amdhsa_next_free_vgpr {vgpr}
  .amdhsa_next_free_sgpr {sgpr}
  .amdhsa_accum_offset {acc}
  .amdhsa_group_segment_fixed_size 0
  .amdhsa_kernarg_size 96
  .amdhsa_user_sgpr_count 2
  .amdhsa_user_sgpr_kernarg_segment_ptr 1
  .amdhsa_system_sgpr_workgroup_id_x 1
.end_amdhsa_kernel
"""


def main():
    out = HEADER
    out += f"; @launch kernel=prep_kernel grid=({P+1},1,1) block=(1024,1,1) lds={PREP_LDS}\n"
    out += f"; @launch kernel=main_kernel grid=({NWG},1,1) block=({64*WPW},1,1) lds={LDS_TOTAL}\n"
    out += '.amdgcn_target "amdgcn-amd-amdhsa--gfx950"\n.text\n'
    out += gen_prep()
    out += gen_main()
    out += '.section .rodata,"a"\n.p2align 6\n'
    out += kd("prep_kernel", 64, 64)
    out += ".p2align 6\n"
    out += kd("main_kernel", 256, 96)
    path = sys.argv[1] if len(sys.argv) > 1 else "gather_scatter__edge_featured_mpnn_gatedgcn__graph.s"
    open(path, "w").write(out)


if __name__ == "__main__":
    main()
```

```python
import sys, os
from emit import Asm, VAlloc, vr, sr

N = 50000
E = 800000
P = 250
C = 3200
NG = 2000
GN = 25
WPW = 8
NWG = NG // WPW
QCAP = 512

OFF_WB, OFF_WV, OFF_WA, OFF_WC, OFF_WU = 0, 8192, 16384, 24576, 32768
WS_DESC = 65536
DESC_BYTES = P * NG * 4
WS_RECS = 4194304
RECS_BYTES = E * 8
SL = 32
WS_SLOTS = 16 << 20
SLOTS_BYTES = NWG * P * SL * 8
MAGIC25 = 171798692
BIG = 0x40000000
EXP = os.environ.get("EXP", "")
FOLD = os.environ.get("FOLD", "1") == "1"
X2 = os.environ.get("X2", "")

HEADER = open("gather_scatter__edge_featured_mpnn_gatedgcn__graph.s.ref").read().split("; @launch")[0]


def srd(a, d, lo, hi, nbytes, add=0):
    if add:
        a(f"s_add_u32 s{d}, s{lo}, {add}")
        a(f"s_addc_u32 s{d+1}, s{hi}, 0")
    else:
        a(f"s_mov_b32 s{d}, s{lo}")
        a(f"s_mov_b32 s{d+1}, s{hi}")
    a(f"s_and_b32 s{d+1}, s{d+1}, 0xffff")
    a(f"s_mov_b32 s{d+2}, {nbytes}")
    a(f"s_mov_b32 s{d+3}, 0x00020000")


def wave_scan(a, v):
    for sh in (1, 2, 4, 8):
        a(f"v_add_u32_dpp v{v}, v{v}, v{v} row_shr:{sh} row_mask:0xf bank_mask:0xf bound_ctrl:0")
    a(f"v_add_u32_dpp v{v}, v{v}, v{v} row_bcast:15 row_mask:0xa bank_mask:0xf")
    a(f"v_add_u32_dpp v{v}, v{v}, v{v} row_bcast:31 row_mask:0xc bank_mask:0xf")


PL_STAGE = NG * 4 + 64
PREP_LDS = PL_STAGE + 4096 * 8


def gen_prep():
    a = Asm()
    a.raw(".globl prep_kernel\n.p2align 8\n.type prep_kernel,@function\nprep_kernel:")
    a(f"s_cmp_gt_u32 s2, {P}")
    a.branch("s_cbranch_scc1 PREP_END2")
    if X2 == "tl":
        a("s_memrealtime s[60:61]")
    a("s_load_dwordx4 s[4:7], s[0:1], 16")
    a("s_load_dwordx2 s[8:9], s[0:1], 88")
    a(f"s_cmp_eq_u32 s2, {P}")
    a.branch("s_cbranch_scc1 PREP_W")
    a("s_waitcnt lgkmcnt(0)")
    srd(a, 12, 6, 7, E * 4)
    srd(a, 16, 4, 5, E * 4)
    srd(a, 20, 8, 9, DESC_BYTES, WS_DESC)
    srd(a, 24, 8, 9, RECS_BYTES, WS_RECS)
    a(f"s_mul_i32 s3, s2, {C*4}")
    a("v_lshl_add_u32 v1, v0, 4, s3")
    a(f"v_cmp_gt_u32 vcc, {C//4}, v0")
    a("s_mov_b64 s[30:31], vcc")
    a(f"v_cmp_gt_u32 vcc, {NG//4}, v0")
    a("s_mov_b64 s[32:33], vcc")
    for k in range(4):
        a(f"v_mov_b32 v{40+k}, 0")
    a("v_lshlrev_b32 v2, 4, v0")
    a("s_mov_b64 exec, s[30:31]")
    a.branch("s_cbranch_execz PREP_A")
    a("buffer_load_dwordx4 v[4:7], v1, s[12:15], 0 offen")
    a("buffer_load_dwordx4 v[8:11], v1, s[16:19], 0 offen")
    a.label("PREP_A")
    PF = os.environ.get("PF", "")
    if PF:
        a("s_mov_b64 exec, -1")
        a("s_load_dwordx4 s[44:47], s[0:1], 0")
        a("s_waitcnt lgkmcnt(0)")
        srd(a, 48, 46, 47, E * 32)
        srd(a, 52, 44, 45, N * 128)
        a(f"s_mul_i32 s56, s2, {C*32}")
        a("v_lshl_add_u32 v33, v0, 4, s56")
        if "e" in PF:
            for k in range(7):
                a(f"s_mov_b32 s57, {k*16384}")
                a(f"buffer_load_dwordx4 v[36:39], v33, s[48:51], s57 offen")
        if "x" in PF:
            a(f"s_mul_i32 s56, s2, {N*128//P}")
            a("v_lshl_add_u32 v33, v0, 4, s56")
            for k in range(2):
                a(f"s_mov_b32 s57, {k*16384}")
                a(f"buffer_load_dwordx4 v[36:39], v33, s[52:55], s57 offen")
    a("s_mov_b64 exec, s[32:33]")
    a.branch("s_cbranch_execz PREP_A2")
    a("ds_write_b128 v2, v[40:43]")
    a.label("PREP_A2")
    a("s_mov_b64 exec, -1")
    a("s_waitcnt lgkmcnt(0)")
    a("s_barrier")
    a("s_mov_b64 exec, s[30:31]")
    a.branch("s_cbranch_execz PREP_B")
    a(f"s_mov_b32 s34, {MAGIC25}")
    a("v_mov_b32 v3, 1")
    a(f"s_waitcnt vmcnt({(7 if 'e' in PF else 0) + (2 if 'x' in PF else 0)})")
    for i in range(4):
        a(f"v_mul_hi_u32 v{12+i}, v{4+i}, s34")
    for i in range(4):
        a(f"v_mul_u32_u24 v{16+i}, {GN}, v{12+i}")
    for i in range(4):
        a(f"v_sub_u32 v{16+i}, v{4+i}, v{16+i}")
    for i in range(4):
        a(f"v_lshlrev_b32 v{12+i}, 2, v{12+i}")
    for i in range(4):
        a(f"ds_add_rtn_u32 v{20+i}, v{12+i}, v3")
    a(f"s_mul_i32 s35, s2, {C}")
    a("v_lshl_add_u32 v32, v0, 2, s35")
    for i in range(4):
        a(f"v_lshl_or_b32 v{24+2*i}, v{8+i}, 7, v{16+i}")
        a(f"v_lshrrev_b32 v33, 5, v{12+i}")
        a(f"v_lshl_or_b32 v{24+2*i}, v33, 23, v{24+2*i}")
        a(f"v_add_u32 v{25+2*i}, {i}, v32")
        a(f"v_bfe_u32 v33, v{12+i}, 2, 3")
        a(f"v_lshl_or_b32 v{25+2*i}, v{25+2*i}, 5, v33")
    a("s_waitcnt lgkmcnt(0)")
    a.label("PREP_B")
    a("s_mov_b64 exec, -1")
    a("s_barrier")
    a("s_mov_b64 exec, s[32:33]")
    a.branch("s_cbranch_execz PREP_C")
    a("ds_read_b128 v[40:43], v2")
    a("s_waitcnt lgkmcnt(0)")
    a.label("PREP_C")
    a("s_mov_b64 exec, -1")
    a("v_add_u32 v44, v40, v41")
    a("v_add_u32 v45, v44, v42")
    a("v_add_u32 v46, v45, v43")
    a("v_mov_b32 v47, v46")
    wave_scan(a, 47)
    a("v_lshrrev_b32 v48, 6, v0")
    a("v_and_b32 v49, 63, v0")
    a("v_readfirstlane_b32 s36, v48")
    a("v_lshlrev_b32 v50, 2, v48")
    a(f"v_add_u32 v50, {NG*4}, v50")
    a("v_cmp_eq_u32 vcc, 63, v49")
    a("s_and_saveexec_b64 s[38:39], vcc")
    a("ds_write_b32 v50, v47")
    a("s_mov_b64 exec, -1")
    a("s_waitcnt lgkmcnt(0)")
    a("s_barrier")
    a("v_and_b32 v51, 15, v49")
    a("v_lshlrev_b32 v50, 2, v51")
    a(f"v_add_u32 v50, {NG*4}, v50")
    a("ds_read_b32 v52, v50")
    a("v_cmp_gt_u32 vcc, s36, v51")
    a("s_waitcnt lgkmcnt(0)")
    a("v_cndmask_b32 v52, 0, v52, vcc")
    for sh in (1, 2, 4, 8):
        a(f"v_add_u32_dpp v52, v52, v52 row_shr:{sh} row_mask:0xf bank_mask:0xf bound_ctrl:0")
    a("v_readlane_b32 s37, v52, 15")
    a("v_sub_u32 v47, v47, v46")
    a("v_add_u32 v47, s37, v47")
    a("v_mov_b32 v56, v47")
    a("v_add_u32 v57, v47, v40")
    a("v_add_u32 v58, v47, v44")
    a("v_add_u32 v59, v47, v45")
    for i in range(4):
        a(f"v_lshl_or_b32 v{60+i}, v{40+i}, 16, v{56+i}")
    a("v_lshrrev_b32 v53, 1, v0")
    a(f"v_mul_u32_u24 v53, {P*32}, v53")
    a("v_and_b32 v54, 1, v0")
    a("v_lshl_add_u32 v53, v54, 4, v53")
    a("s_lshl_b32 s3, s2, 5")
    a("v_add_u32 v53, s3, v53")
    a("s_mov_b64 exec, s[32:33]")
    a.branch("s_cbranch_execz PREP_D")
    a("ds_write_b128 v2, v[56:59]")
    a("buffer_store_dwordx4 v[60:63], v53, s[20:23], 0 offen")
    a.label("PREP_D")
    a("s_mov_b64 exec, -1")
    a("s_waitcnt lgkmcnt(0)")
    a("s_barrier")
    a("s_mov_b64 exec, s[30:31]")
    a.branch("s_cbranch_execz PREP_E")
    for i in range(4):
        a(f"ds_read_b32 v{12+i}, v{12+i}")
    a("s_waitcnt lgkmcnt(0)")
    for i in range(4):
        a(f"v_add_u32 v{12+i}, v{12+i}, v{20+i}")
        a(f"v_lshlrev_b32 v{12+i}, 3, v{12+i}")
        a(f"ds_write_b64 v{12+i}, v[{24+2*i}:{25+2*i}] offset:{PL_STAGE}")
    a.label("PREP_E")
    a("s_mov_b64 exec, -1")
    a("s_waitcnt lgkmcnt(0)")
    a("s_barrier")
    srd(a, 40, 8, 9, SLOTS_BYTES, WS_SLOTS)
    a("v_lshlrev_b32 v2, 3, v0")
    for k in range(4):
        a(f"ds_read_b64 v[{24+2*k}:{25+2*k}], v2 offset:{PL_STAGE + k*8192}")
    a("s_waitcnt lgkmcnt(0)")
    for k in range(4):
        a(f"v_lshrrev_b32 v{12+k}, 23, v{24+2*k}")
        a(f"v_min_u32 v{12+k}, {NWG-1}, v{12+k}")
        a(f"v_lshlrev_b32 v{16+k}, 5, v{12+k}")
        a(f"ds_read_b32 v{16+k}, v{16+k}")
    a(f"s_mul_i32 s35, s2, {C}")
    a(f"s_lshl_b32 s36, s2, 5")
    a("s_waitcnt lgkmcnt(0)")
    a("s_mov_b64 s[44:45], 0")
    for k in range(4):
        a(f"v_add_u32 v20, {1024*k}, v0")
        a(f"v_sub_u32 v21, v20, v{16+k}")
        a(f"v_mul_u32_u24 v22, {P*SL}, v{12+k}")
        a(f"v_add3_u32 v22, v22, v21, s36")
        a(f"v_lshlrev_b32 v22, 3, v22")
        a(f"v_cmp_gt_u32 vcc, {C}, v20")
        a(f"s_mov_b64 s[46:47], vcc")
        a(f"v_cmp_gt_u32 vcc, {SL}, v21")
        a(f"s_and_b64 exec, vcc, s[46:47]")
        a(f"buffer_store_dwordx2 v[{24+2*k}:{25+2*k}], v22, s[40:43], 0 offen")
        a(f"s_andn2_b64 exec, s[46:47], vcc")
        a.branch(f"s_cbranch_execz PREP_NOVF{k}")
        a(f"v_add_u32 v22, s35, v20")
        a(f"v_lshlrev_b32 v22, 3, v22")
        a(f"buffer_store_dwordx2 v[{24+2*k}:{25+2*k}], v22, s[24:27], 0 offen")
        a.label(f"PREP_NOVF{k}")
        a("s_mov_b64 exec, -1")
    a.branch("s_branch PREP_END")

    a.label("PREP_W")
    a("s_load_dwordx4 s[12:15], s[0:1], 32")
    a("s_load_dwordx4 s[16:19], s[0:1], 48")
    a("s_load_dwordx2 s[20:21], s[0:1], 64")
    a("s_waitcnt lgkmcnt(0)")
    srd(a, 24, 8, 9, 65536)
    srd(a, 28, 12, 13, 8192)
    srd(a, 32, 14, 15, 8192)
    srd(a, 36, 16, 17, 2048)
    srd(a, 40, 18, 19, 8192)
    srd(a, 44, 20, 21, 8192)
    a("v_and_b32 v1, 31, v0")
    a("v_bfe_u32 v2, v0, 5, 1")
    a("v_bfe_u32 v3, v0, 6, 1")
    a("v_bfe_u32 v4, v0, 7, 2")
    a("v_lshlrev_b32 v5, 12, v2")
    a("v_lshl_add_u32 v5, v4, 10, v5")
    a("v_lshl_add_u32 v5, v1, 2, v5")
    a("v_lshl_add_u32 v5, v3, 1, v5")
    a("v_lshlrev_b32 v6, 4, v0")
    a("v_cmp_gt_u32 vcc, 512, v0")
    a("s_and_saveexec_b64 s[48:49], vcc")
    a.branch("s_cbranch_execz PREP_W2")
    mats = ((32, OFF_WB), (44, OFF_WV), (28, OFF_WA), (40, OFF_WU))
    for mi, (sd, off) in enumerate(mats):
        for j in range(8):
            a(f"buffer_load_ushort v{8+8*mi+j}, v5, s[{sd}:{sd+3}], 0 offen offset:{j*128}")
    a("v_mov_b32 v60, 0xbfb8aa3b")
    for mi, (sd, off) in enumerate(mats):
        a(f"s_waitcnt vmcnt({24-8*mi+mi})")
        for j in range(4):
            if FOLD and off == OFF_WB:
                a(f"v_lshlrev_b32 v{8+8*mi+2*j}, 16, v{8+8*mi+2*j}")
                a(f"v_lshlrev_b32 v{9+8*mi+2*j}, 16, v{9+8*mi+2*j}")
                a(f"v_mul_f32 v{8+8*mi+2*j}, v60, v{8+8*mi+2*j}")
                a(f"v_mul_f32 v{9+8*mi+2*j}, v60, v{9+8*mi+2*j}")
                a(f"v_cvt_pk_bf16_f32 v{40+4*mi+j}, v{8+8*mi+2*j}, v{9+8*mi+2*j}")
            else:
                a(f"v_lshl_or_b32 v{40+4*mi+j}, v{9+8*mi+2*j}, 16, v{8+8*mi+2*j}")
        a(f"s_mov_b32 s50, {off}")
        a(f"buffer_store_dwordx4 v[{40+4*mi}:{43+4*mi}], v6, s[24:27], s50 offen")
    a.label("PREP_W2")
    a("s_mov_b64 exec, -1")
    a("v_subrev_u32 v7, 512, v0")
    a("v_cmp_gt_u32 vcc, 128, v7")
    a("s_and_saveexec_b64 s[48:49], vcc")
    a.branch("s_cbranch_execz PREP_END")
    a("v_lshlrev_b32 v5, 10, v2")
    a("v_lshl_add_u32 v5, v1, 2, v5")
    a("v_lshl_add_u32 v5, v3, 1, v5")
    a("v_lshlrev_b32 v6, 4, v7")
    for j in range(8):
        a(f"buffer_load_ushort v{8+j}, v5, s[36:39], 0 offen offset:{j*128}")
    a("s_waitcnt vmcnt(0)")
    a("v_mov_b32 v60, 0xbfb8aa3b")
    for j in range(4):
        if FOLD:
            a(f"v_lshlrev_b32 v{8+2*j}, 16, v{8+2*j}")
            a(f"v_lshlrev_b32 v{9+2*j}, 16, v{9+2*j}")
            a(f"v_mul_f32 v{8+2*j}, v60, v{8+2*j}")
            a(f"v_mul_f32 v{9+2*j}, v60, v{9+2*j}")
            a(f"v_cvt_pk_bf16_f32 v{16+j}, v{8+2*j}, v{9+2*j}")
        else:
            a(f"v_lshl_or_b32 v{16+j}, v{9+2*j}, 16, v{8+2*j}")
    a(f"s_mov_b32 s50, {OFF_WC}")
    a("buffer_store_dwordx4 v[16:19], v6, s[24:27], s50 offen")
    a.label("PREP_END")
    if X2 == "tl":
        a("s_mov_b64 exec, -1")
        a("s_waitcnt vmcnt(0) lgkmcnt(0)")
        a("s_memrealtime s[62:63]")
        a("s_waitcnt lgkmcnt(0)")
        srd(a, 52, 8, 9, 65536, 128 << 20)
        a("v_lshrrev_b32 v1, 6, v0")
        a("s_lshl_b32 s56, s2, 7")
        a("v_lshl_add_u32 v1, v1, 3, s56")
        a("v_mov_b32 v2, s60")
        a("v_mov_b32 v3, s62")
        a("buffer_store_dwordx2 v[2:3], v1, s[52:55], 0 offen")
    a.label("PREP_END2")
    a("s_endpgm")
    return a.text()


NSLOT = QCAP + 128
L_AP = 0
L_REC = 8192
L_DL = L_REC + NSLOT * 8
L_MLO = L_DL + NSLOT * 4
L_MHI = L_MLO + NSLOT * 2
LDSW = L_MHI + NSLOT * 2
assert LDSW % 256 == 0, LDSW
L_DSC = 0
L_LENW = WPW * 1024
L_TJ = L_LENW + 1024
L_WBASE = L_TJ + 256
LDS_TOTAL = L_WBASE + WPW * LDSW
assert LDS_TOTAL <= 163840
INLOOP = [False]


def mfma32(a, d, x, y, c):
    if X2 == "nomfma" and INLOOP[0]:
        return
    a(f"v_mfma_f32_32x32x16_bf16 {vr(d,16)}, {vr(x,4)}, {vr(y,4)}, {c}")


def gen_main():
    a = Asm()
    R = VAlloc(0, 256)
    R.alloc("tid")
    vL = R.alloc("lane")
    vI = R.alloc("i")
    vH = R.alloc("h")
    vH64 = R.alloc("h64")
    vH16 = R.alloc("h16")
    vN4 = R.alloc("n4")
    vSh = R.alloc("sh")
    vRecA = R.alloc("recaddr")
    vDlA = R.alloc("dladdr")
    vMkA = R.alloc("maskaddr")
    vK = R.alloc("K")
    RC = R.alloc("RC", 2, 2)
    vM1 = R.alloc("m10001")
    vB1 = R.alloc("b3f80")
    WB = R.alloc("WB", 32, 4)
    WV = R.alloc("WV", 32, 4)
    WC = R.alloc("WC", 8, 4)
    DEN = R.alloc("DEN", 32, 4)
    NUM = R.alloc("NUM", 32, 4)
    G = R.alloc("G", 16, 4)
    H = R.alloc("H", 16, 4)
    G1 = R.alloc("G1", 16, 4)
    AD = H
    OH = R.alloc("OH", 8, 4)
    GB = R.alloc("GB", 40, 4)
    vMX = R.alloc("maskx")
    vME = R.alloc("maske")
    print("vgprs used:", R.next, file=sys.stderr)

    SX, SEA, SW, SD, SR_, SO, SS = 8, 12, 16, 20, 24, 28, 56
    s_wv, s_G, s_ns, s_T, s_R, s_NS, s_lds, s_tmp, s_Tn, s_mx, s_q, s_lw = 36, 37, 38, 40, 41, 42, 43, 45, 46, 47, 48, 49

    def ps(k):
        if X2 == "pro":
            a(f"s_memtime s[{60+2*k}:{61+2*k}]")
            a("s_waitcnt lgkmcnt(0)")

    a.raw(".globl main_kernel\n.p2align 8\n.type main_kernel,@function\nmain_kernel:")
    a(f"s_cmp_ge_u32 s2, {NWG}")
    a.branch("s_cbranch_scc1 MAIN_END")
    ps(0)
    if X2 == "tl":
        a("s_memrealtime s[60:61]")
    a("s_load_dwordx4 s[4:7], s[0:1], 0")
    a("s_load_dwordx2 s[32:33], s[0:1], 72")
    a("s_load_dwordx2 s[34:35], s[0:1], 88")
    a(f"v_lshrrev_b32 v{vL}, 6, v0")
    a(f"v_readfirstlane_b32 s{s_wv}, v{vL}")
    a(f"v_and_b32 v{vL}, 63, v0")
    a(f"v_and_b32 v{vI}, 31, v0")
    a(f"v_bfe_u32 v{vH}, v0, 5, 1")
    a(f"v_lshlrev_b32 v{vH64}, 6, v{vH}")
    a(f"v_lshlrev_b32 v{vH16}, 4, v{vH}")
    a(f"v_and_b32 v{vSh}, 15, v0")
    a(f"s_lshl_b32 s{s_G}, s2, 3")
    a(f"s_add_u32 s{s_G}, s{s_G}, s{s_wv}")
    a(f"s_mul_i32 s{s_ns}, s{s_G}, {GN}")
    a(f"s_mul_i32 s{s_lds}, s{s_wv}, {LDSW}")
    a(f"s_add_u32 s{s_lds}, s{s_lds}, {L_WBASE}")
    a(f"s_mov_b32 s{s_q}, {QCAP}")
    a(f"s_mov_b32 s{s_lw}, {LDSW}")
    a(f"v_mov_b32 v{vK}, 0xbfb8aa3b")
    a(f"v_mov_b32 v{vM1}, 0x10001")
    a(f"v_mov_b32 v{vB1}, 0x3f80")
    a(f"v_mov_b32 v{vMX}, 0x007fff80")
    a(f"v_mov_b32 v{vME}, 0xffffffe0")
    a(f"v_lshlrev_b32 v{vN4}, 2, v{vI}")
    a(f"v_add_u32 v{vN4}, s{s_lds}, v{vN4}")
    a("s_waitcnt lgkmcnt(0)")
    srd(a, SD, 34, 35, DESC_BYTES, WS_DESC)
    srd(a, SW, 34, 35, OFF_WC + 2048)
    srd(a, SS, 34, 35, SLOTS_BYTES, WS_SLOTS)
    SLT = GB
    vtmp = GB + 32
    vD = G
    WS0 = H
    a(f"s_mul_i32 s{s_tmp}, s2, {P*32}")
    a(f"v_lshl_add_u32 v{vtmp}, v0, 5, s{s_tmp}")
    a(f"v_mov_b32 v{vtmp+3}, {BIG}")
    a(f"v_cmp_gt_u32 vcc, {P}, v0")
    a(f"v_cndmask_b32 v{vtmp}, v{vtmp+3}, v{vtmp}, vcc")
    a(f"buffer_load_dwordx4 {vr(vD,4)}, v{vtmp}, s[{SD}:{SD+3}], 0 offen")
    a(f"buffer_load_dwordx4 {vr(vD+4,4)}, v{vtmp}, s[{SD}:{SD+3}], 0 offen offset:16")
    a(f"v_lshlrev_b32 v{vtmp+2}, 4, v0")
    for k in range(4):
        a(f"s_mov_b32 s{s_tmp}, {k*8192}")
        a(f"buffer_load_dwordx4 {vr(WS0+4*k,4)}, v{vtmp+2}, s[{SW}:{SW+3}], s{s_tmp} offen")

    def slot_addr():
        a(f"v_lshrrev_b32 v{vtmp+2}, 3, v0")
        a(f"v_lshlrev_b32 v{vtmp+2}, 8, v{vtmp+2}")
        a(f"v_and_b32 v{vtmp+3}, 7, v0")
        a(f"v_lshl_add_u32 v{vtmp+2}, v{vtmp+3}, 4, v{vtmp+2}")

    def load_slots():
        slot_addr()
        for k in range(4):
            a(f"s_mul_i32 s{s_tmp}, s2, {P*SL*8}")
            a(f"s_add_u32 s{s_tmp}, s{s_tmp}, {k*16384}")
            a(f"buffer_load_dwordx4 {vr(SLT+4*k,4)}, v{vtmp+2}, s[{SS}:{SS+3}], s{s_tmp} offen")

    srd(a, SX, 4, 5, N * 128)
    srd(a, SEA, 6, 7, E * 32)
    srd(a, SW, 34, 35, 65536)
    srd(a, SR_, 34, 35, RECS_BYTES, WS_RECS)
    srd(a, SO, 32, 33, N * 128)
    for k in range(32):
        a(f"v_mov_b32 v{DEN+k}, 0")
    a("s_waitcnt vmcnt(4)")
    a(f"v_lshlrev_b32 v{vtmp}, 2, v0")
    a(f"v_lshrrev_b32 v{vtmp+4}, 16, v{vD}")
    for j in range(1, 8):
        a(f"v_lshrrev_b32 v{vtmp+5}, 16, v{vD+j}")
        a(f"v_add_u32 v{vtmp+4}, v{vtmp+4}, v{vtmp+5}")
    a(f"v_lshl_or_b32 v{vtmp+4}, v{vD}, 16, v{vtmp+4}")
    a(f"v_cmp_gt_u32 vcc, 256, v0")
    a("s_and_saveexec_b64 s[52:53], vcc")
    a.branch("s_cbranch_execz DSC_SKIP")
    for j in range(WPW):
        a(f"ds_write_b32 v{vtmp}, v{vD+j} offset:{L_DSC + j*1024}")
    a(f"ds_write_b32 v{vtmp}, v{vtmp+4} offset:{L_LENW}")
    a.label("DSC_SKIP")
    a("s_mov_b64 exec, -1")
    a("s_waitcnt vmcnt(0)")
    for k in range(4):
        if k == 3:
            a(f"v_cmp_gt_u32 vcc, 128, v0")
            a("s_and_saveexec_b64 s[52:53], vcc")
            a.branch("s_cbranch_execz WST_SKIP")
        a(f"ds_write_b128 v{vtmp+2}, {vr(WS0+4*k,4)} offset:{L_WBASE + k*LDSW + L_AP if k < 3 else L_WBASE + L_REC}")
    a.label("WST_SKIP")
    a("s_mov_b64 exec, -1")
    a("s_waitcnt lgkmcnt(0)")
    a("s_barrier")
    ps(1)
    load_slots()
    WAt = NUM
    XO = G
    vC = G1
    vS = G1 + 4
    vLw = G1 + 8
    vTot = G1 + 12
    vInc = G1 + 13
    vB = OH
    a(f"s_lshl_b32 s{s_tmp}, s{s_wv}, 10")
    a(f"v_lshl_add_u32 v{vtmp}, v{vL}, 2, s{s_tmp}")
    a(f"v_lshlrev_b32 v{vtmp+1}, 2, v{vL}")
    for k in range(4):
        a(f"ds_read_b32 v{vD+k}, v{vtmp} offset:{L_DSC + k*256}")
    for k in range(4):
        a(f"ds_read_b32 v{vLw+k}, v{vtmp+1} offset:{L_LENW + k*256}")
    a(f"v_lshlrev_b32 v{vtmp+2}, 4, v{vL}")
    for (base, off) in ((WAt, OFF_WA), (WB, OFF_WB), (WV, OFF_WV)):
        for k in range(8):
            a(f"ds_read_b128 {vr(base+4*k,4)}, v{vtmp+2} offset:{L_WBASE + (off//8192)*LDSW + L_AP + k*1024}")
    for c in range(2):
        a(f"ds_read_b128 {vr(WC+4*c,4)}, v{vtmp+2} offset:{L_WBASE + L_REC + c*1024}")
    a("s_waitcnt lgkmcnt(15)")
    for k in range(4):
        a(f"v_lshrrev_b32 v{vC+k}, 16, v{vD+k}")
        a(f"v_and_b32 v{vS+k}, 0xffff, v{vD+k}")
    a(f"v_add_u32 v{vTot}, v{vC}, v{vC+1}")
    a(f"v_add3_u32 v{vTot}, v{vTot}, v{vC+2}, v{vC+3}")
    a(f"v_mov_b32 v{vInc}, v{vTot}")
    wave_scan(a, vInc)
    a(f"v_readlane_b32 s{s_T}, v{vInc}, 63")
    a(f"v_sub_u32 v{vB}, v{vInc}, v{vTot}")
    a(f"v_add_u32 v{vB+1}, v{vB}, v{vC}")
    a(f"v_add_u32 v{vB+2}, v{vB+1}, v{vC+1}")
    a(f"v_add_u32 v{vB+3}, v{vB+2}, v{vC+2}")
    for k in range(4):
        a(f"v_lshrrev_b32 v{vLw+k}, 16, v{vLw+k}")
        a(f"v_sub_u32 v{vB+k}, v{vB+k}, v{vS+k}")
        a(f"v_add_u32 v{vB+k}, v{vB+k}, v{vLw+k}")
        a(f"ds_write_b32 v{vtmp}, v{vB+k} offset:{L_DSC + k*256}")
    a(f"v_mov_b32 v{vTot}, s{s_T}")
    a(f"s_lshl_b32 s{s_tmp}, s{s_wv}, 2")
    a(f"v_mov_b32 v{vInc}, s{s_tmp}")
    a(f"ds_write_b32 v{vInc}, v{vTot} offset:{L_TJ}")
    a("s_waitcnt lgkmcnt(0)")
    a("s_barrier")
    ps(2)
    a(f"v_mov_b32 v{vInc}, 0")
    a(f"ds_read_b128 {vr(G1,4)}, v{vInc} offset:{L_TJ}")
    a(f"ds_read_b128 {vr(G1+4,4)}, v{vInc} offset:{L_TJ+16}")
    a("s_waitcnt lgkmcnt(0)")
    a(f"v_max3_u32 v{G1}, v{G1}, v{G1+1}, v{G1+2}")
    a(f"v_max3_u32 v{G1}, v{G1}, v{G1+3}, v{G1+4}")
    a(f"v_max3_u32 v{G1}, v{G1}, v{G1+5}, v{G1+6}")
    a(f"v_max_u32 v{G1}, v{G1}, v{G1+7}")
    a(f"v_readfirstlane_b32 s{s_mx}, v{G1}")
    a(f"s_mov_b32 s{s_R}, 0")

    a.label("ROUND")
    a(f"s_sub_u32 s{s_Tn}, s{s_T}, s{s_R}")
    a(f"s_cselect_b32 s{s_Tn}, 0, s{s_Tn}")
    a(f"s_min_u32 s{s_Tn}, s{s_Tn}, {QCAP}")
    vt = H
    vi, vad, vval, vdum = vt, vt + 1, vt + 2, vt + 4
    a(f"v_mov_b32 v{vdum}, 0x007fff80")
    a(f"v_mov_b32 v{vdum+1}, {BIG}")
    a(f"v_add_u32 v{vi}, s{s_Tn}, v{vL}")
    a(f"v_lshl_add_u32 v{vad}, v{vi}, 3, s{s_lds}")
    a(f"ds_write_b64 v{vad}, {vr(vdum,2)} offset:{L_REC}")
    a(f"ds_write_b64 v{vad}, {vr(vdum,2)} offset:{L_REC+512}")
    a(f"v_lshl_add_u32 v{vad}, v{vi}, 2, s{s_lds}")
    a(f"v_mov_b32 v{vval}, {31*256}")
    a(f"ds_write_b32 v{vad}, v{vval} offset:{L_DL}")
    a(f"ds_write_b32 v{vad}, v{vval} offset:{L_DL+256}")
    a(f"v_lshl_add_u32 v{vad}, v{vi}, 1, s{s_lds}")
    a(f"v_mov_b32 v{vval}, 0")
    a(f"ds_write_b16 v{vad}, v{vval} offset:{L_MLO}")
    a(f"ds_write_b16 v{vad}, v{vval} offset:{L_MLO+128}")
    a(f"ds_write_b16 v{vad}, v{vval} offset:{L_MHI}")
    a(f"ds_write_b16 v{vad}, v{vval} offset:{L_MHI+128}")
    vT4 = vt + 6
    vS0 = vt + 7
    vSR0 = vt + 8
    vLen = G1
    vDl = OH
    vj, vpos, vwb, va = vt + 9, vt + 10, vt + 11, vt + 15
    vLDSW = vt + 3
    vS1 = RC
    vSR1 = RC + 1
    a(f"v_lshrrev_b32 v{vT4}, 3, v0")
    a(f"v_lshlrev_b32 v{vT4}, 2, v{vT4}")
    a(f"v_and_b32 v{vS0}, 7, v0")
    a(f"v_lshlrev_b32 v{vS0}, 1, v{vS0}")
    for k in range(4):
        a(f"ds_read_b32 v{vLen+k}, v{vT4} offset:{L_LENW + k*256}")
    a(f"v_mov_b32 v{vLDSW}, {LDSW}")
    slot_addr()
    a(f"v_mov_b32 v{vtmp+3}, {BIG}")
    a(f"v_add_u32 v{vS1}, 16, v{vS0}")
    a("s_waitcnt lgkmcnt(0)")
    for k in range(4):
        a(f"v_and_b32 v{vLen+k}, 0xffff, v{vLen+k}")
    for k in range(4):
        a(f"v_cmp_lt_u32 vcc, v{vS1}, v{vLen+k}")
        a(f"v_cndmask_b32 v{vtmp+4+k}, v{vtmp+3}, v{vtmp+2}, vcc")
        a(f"s_mul_i32 s{s_tmp}, s2, {P*SL*8}")
        a(f"s_add_u32 s{s_tmp}, s{s_tmp}, {k*16384 + 128}")
        a(f"buffer_load_dwordx4 {vr(SLT+16+4*k,4)}, v{vtmp+4+k}, s[{SS}:{SS+3}], s{s_tmp} offen")

    def scatter(w0, w1, vdelta, vsr, valid_cmp):
        a(f"v_add_u32 v{vpos}, v{vdelta}, v{vsr}")
        a(f"v_and_b32 v{vj}, 7, v{w1}")
        a(f"v_mul_u32_u24 v{vwb}, v{vj}, v{vLDSW}")
        valid_cmp()
        a(f"v_cmp_gt_u32 s[52:53], s{s_q}, v{vpos}")
        a(f"v_lshl_add_u32 v{va}, v{vpos}, 3, v{vwb}")
        a(f"s_and_b64 exec, vcc, s[52:53]")
        a(f"ds_write_b64 v{va}, v[{w0}:{w1}] offset:{L_WBASE + L_REC}")
        a("s_mov_b64 exec, -1")

    for lvl in range(2):
        a(f"s_waitcnt vmcnt(4)")
        if lvl == 1:
            a(f"s_cmp_eq_u32 s{s_R}, 0")
            a.branch("s_cbranch_scc1 L2_OK")
            a("s_waitcnt vmcnt(0)")
            a.label("L2_OK")
        if lvl == 0:
            ps(3)
        a(f"v_add_u32 v{vS1}, 1, v{vS0}")
        a(f"v_subrev_u32 v{vSR0}, s{s_R}, v{vS0}")
        a(f"v_add_u32 v{vSR1}, 1, v{vSR0}")
        for k in range(4):
            for e in range(2):
                w1 = SLT + 16 * lvl + 4 * k + 2 * e + 1
                a(f"v_and_b32 v{vj}, 7, v{w1}")
                a(f"v_lshl_add_u32 v{va}, v{vj}, 10, v{vT4}")
                a(f"ds_read_b32 v{vDl+2*k+e}, v{va} offset:{L_DSC + k*256}")
        a("s_waitcnt lgkmcnt(0)")
        for k in range(4):
            for e in range(2):
                w0 = SLT + 16 * lvl + 4 * k + 2 * e
                scatter(w0, w0 + 1, vDl + 2 * k + e, vSR0 if e == 0 else vSR1,
                        lambda k=k, e=e: a(f"v_cmp_lt_u32 vcc, v{vS0 if e == 0 else vS1}, v{vLen+k}"))
        if lvl == 0:
            a(f"v_add_u32 v{vS0}, 16, v{vS0}")
            XO = GB
            a(f"s_cmp_lg_u32 s{s_R}, 0")
            a.branch("s_cbranch_scc1 XO_SKIP")
            a(f"v_add_u32 v{va}, s{s_ns}, v{vI}")
            a(f"v_lshl_add_u32 v{va}, v{va}, 7, v{vH64}")
            for s in range(4):
                a(f"buffer_load_dwordx4 {vr(XO+4*s,4)}, v{va}, s[{SX}:{SX+3}], 0 offen offset:{16*s}")
            a.label("XO_SKIP")
    vo_len, vo_s, vo_base = G1, G1 + 1, G1 + 2
    vo_rec = G1 + 4
    vo_d, vo_sr = G1 + 6, G1 + 7
    a(f"v_lshlrev_b32 v{vad}, 2, v0")
    a(f"v_and_b32 v{vad}, 0x3ff, v{vad}")
    a(f"ds_read_b32 v{vo_len}, v{vad} offset:{L_LENW}")
    a("s_waitcnt lgkmcnt(0)")
    a(f"v_lshrrev_b32 v{vo_base}, 16, v{vo_len}")
    a(f"v_and_b32 v{vo_len}, 0xffff, v{vo_len}")
    a(f"v_cmp_gt_u32 vcc, 256, v0")
    a(f"v_cndmask_b32 v{vo_len}, 0, v{vo_len}, vcc")
    a(f"v_mul_u32_u24 v{vo_s}, {C}, v0")
    a(f"v_add_u32 v{vo_base}, v{vo_base}, v{vo_s}")
    a(f"v_mov_b32 v{vo_s}, {SL}")
    a.label("OVF")
    a(f"v_cmp_lt_u32 vcc, v{vo_s}, v{vo_len}")
    a("s_nop 1")
    a("s_cbranch_vccz OVF_DONE")
    a(f"v_add_u32 v{vo_d}, v{vo_base}, v{vo_s}")
    a(f"v_lshlrev_b32 v{vo_d}, 3, v{vo_d}")
    a(f"v_mov_b32 v{vo_sr}, {BIG}")
    a(f"v_cndmask_b32 v{vo_d}, v{vo_sr}, v{vo_d}, vcc")
    a(f"buffer_load_dwordx2 {vr(vo_rec,2)}, v{vo_d}, s[{SR_}:{SR_+3}], 0 offen")
    a("s_waitcnt vmcnt(0)")
    a(f"v_and_b32 v{vj}, 7, v{vo_rec+1}")
    a(f"v_lshl_add_u32 v{va}, v{vj}, 10, v{vad}")
    a(f"ds_read_b32 v{vo_d}, v{va} offset:{L_DSC}")
    a(f"v_subrev_u32 v{vo_sr}, s{s_R}, v{vo_s}")
    a("s_waitcnt lgkmcnt(0)")
    scatter(vo_rec, vo_rec + 1, vo_d, vo_sr, lambda: a(f"v_cmp_lt_u32 vcc, v{vo_s}, v{vo_len}"))
    a(f"v_add_u32 v{vo_s}, 1, v{vo_s}")
    a.branch("s_branch OVF")
    a.label("OVF_DONE")
    ps(4)
    a("s_waitcnt lgkmcnt(0)")
    a("s_barrier")
    ps(5)
    NM = QCAP // 64
    a(f"v_lshl_add_u32 v{RC}, v{vL}, 3, s{s_lds}")
    for m in range(NM):
        a(f"ds_read_b32 v{G+m}, v{RC} offset:{L_REC + m*512}")
    a(f"v_lshl_add_u32 v{G1}, v{vL}, 2, s{s_lds}")
    a(f"v_lshl_add_u32 v{G1+1}, v{vL}, 1, s{s_lds}")
    a("s_waitcnt lgkmcnt(0)")
    for m in range(NM):
        a(f"v_add_u32 v{G1+2}, {64*m}, v{vL}")
        a(f"v_cmp_gt_u32 vcc, s{s_Tn}, v{G1+2}")
        a(f"s_and_b64 exec, exec, vcc")
        a.branch(f"s_cbranch_execz DRV_DONE")
        a(f"v_and_b32 v{G+m}, 31, v{G+m}")
        a(f"v_lshlrev_b32 v{G1+3}, v{G+m}, 1")
        a(f"v_lshrrev_b32 v{G1+4}, 16, v{G1+3}")
        a(f"v_lshlrev_b32 v{G+m}, 8, v{G+m}")
        a(f"ds_write_b32 v{G1}, v{G+m} offset:{L_DL + m*256}")
        a(f"ds_write_b16 v{G1+1}, v{G1+3} offset:{L_MLO + m*128}")
        a(f"ds_write_b16 v{G1+1}, v{G1+4} offset:{L_MHI + m*128}")
    a.label("DRV_DONE")
    a("s_mov_b64 exec, -1")
    ps(6)
    a(f"s_add_u32 s{s_NS}, s{s_Tn}, 31")
    a(f"s_lshr_b32 s{s_NS}, s{s_NS}, 5")
    a(f"v_lshl_add_u32 v{vRecA}, v{vI}, 3, s{s_lds}")
    a(f"v_lshl_add_u32 v{vDlA}, v{vH}, 4, s{s_lds}")
    a(f"v_bfe_u32 v{RC}, v{vI}, 4, 1")
    a(f"v_mul_u32_u24 v{RC}, {L_MHI-L_MLO}, v{RC}")
    a(f"v_lshl_add_u32 v{vMkA}, v{vH}, 3, s{s_lds}")
    a(f"v_add_u32 v{vMkA}, v{vMkA}, v{RC}")

    def gathers(b):
        base = GB + 20 * b
        a(f"v_and_or_b32 v{RC}, v{RC}, v{vMX}, v{vH64}")
        a(f"v_and_or_b32 v{RC+1}, v{RC+1}, v{vME}, v{vH16}")
        for s in range(4):
            a(f"buffer_load_dwordx4 {vr(base+4*s,4)}, v{RC}, s[{SX}:{SX+3}], 0 offen offset:{16*s}")
        a(f"buffer_load_dwordx4 {vr(base+16,4)}, v{RC+1}, s[{SEA}:{SEA+3}], 0 offen nt")

    a(f"ds_read_b64 {vr(RC,2)}, v{vRecA} offset:{L_REC}")
    a("s_waitcnt lgkmcnt(0)")
    gathers(1)
    a(f"s_cmp_lg_u32 s{s_R}, 0")
    a.branch("s_cbranch_scc1 AP_DONE")
    a("s_waitcnt vmcnt(5)")
    a(f"v_lshl_add_u32 v{RC}, v{vH}, 10, v{vN4}")
    for c in range(2):
        d = H if c == 0 else G1
        for s in range(4):
            mfma32(a, d, XO + 4 * s, WAt + 4 * (2 * s + c), "0" if s == 0 else vr(d, 16))
    for c in range(2):
        d = H if c == 0 else G1
        for r in range(16):
            row = 8 * (r >> 2) + (r & 3)
            if FOLD:
                a(f"v_mul_f32 v{d+r}, v{vK}, v{d+r}")
            a(f"ds_write_b32 v{RC}, v{d+r} offset:{L_AP + row*256 + c*128}")
    for k in range(32):
        a(f"v_mov_b32 v{NUM+k}, 0")
    a.label("AP_DONE")
    ps(7)
    a(f"s_cmp_eq_u32 s{s_NS}, 0")
    a.branch("s_cbranch_scc1 LOOP_DONE")
    if EXP == "noloop":
        a.branch("s_branch EPILOGUE")
    if EXP in ("nogather", "noea"):
        a(f"s_mov_b32 s{SEA+2}, 0")
    if EXP in ("nogather", "nox"):
        a(f"s_mov_b32 s{SX+2}, 0")

    def merge(valu, mf, first_gap=0):
        n, m = len(valu), len(mf)
        pos = [first_gap + (k * (n - first_gap)) // max(m, 1) for k in range(m)]
        k = 0
        for idx, ins in enumerate(valu):
            while k < m and pos[k] <= idx:
                mf[k]()
                k += 1
            a(ins)
        while k < m:
            mf[k]()
            k += 1

    def valu_g(g):
        L = []
        for r in range(16):
            if not FOLD:
                L.append(f"v_mul_f32 v{g+r}, v{vK}, v{g+r}")
        for r in range(16):
            L.append(f"v_exp_f32 v{g+r}, v{g+r}")
        for r in range(16):
            L.append(f"v_add_f32 v{g+r}, 1.0, v{g+r}")
        for r in range(16):
            L.append(f"v_rcp_f32 v{g+r}, v{g+r}")
        return L

    def pc(g):
        for r in range(16):
            a(f"v_mul_f32 v{H+r}, v{H+r}, v{g+r}")
        for j in range(8):
            a(f"v_cvt_pk_bf16_f32 v{g+j}, v{g+2*j}, v{g+2*j+1}")
        for j in range(8):
            a(f"v_cvt_pk_bf16_f32 v{H+j}, v{H+2*j}, v{H+2*j+1}")

    def gchain(b, c, g):
        base = GB + 20 * b
        L = [(lambda s=s: mfma32(a, g, base + 4 * s, WB + 4 * (2 * s + c), vr(g, 16))) for s in range(4)]
        L.append(lambda: mfma32(a, g, base + 16, WC + 4 * c, vr(g, 16)))
        return L

    def hchain(b, c):
        base = GB + 20 * b
        return [(lambda s=s: mfma32(a, H, base + 4 * s, WV + 4 * (2 * s + c), "0" if s == 0 else vr(H, 16))) for s in range(4)]

    def rchain(c, g):
        L = []
        for s in range(2):
            L.append(lambda s=s: mfma32(a, DEN + 16 * c, OH + 4 * s, g + 4 * s, vr(DEN + 16 * c, 16)))
            L.append(lambda s=s: mfma32(a, NUM + 16 * c, OH + 4 * s, H + 4 * s, vr(NUM + 16 * c, 16)))
        return L

    def step(b):
        a(f"ds_read_b64 {vr(RC,2)}, v{vRecA} offset:{L_REC + 256}")
        for q in range(4):
            a(f"ds_read_b128 {vr(AD+4*q,4)}, v{vDlA} offset:{L_DL + q*32}")
        for q in range(4):
            a(f"ds_read_b64 {vr(OH+2*q,2)}, v{vMkA} offset:{L_MLO + q*16}")
        a("s_waitcnt lgkmcnt(8)")
        gathers(1 - b)
        a("s_waitcnt lgkmcnt(4)")
        for k in range(16):
            a(f"v_add_u32 v{AD+k}, v{AD+k}, v{vN4}")
        for r in range(16):
            a(f"ds_read_b32 v{G+r}, v{AD+r} offset:{L_AP}")
        for r in range(16):
            a(f"ds_read_b32 v{G1+r}, v{AD+r} offset:{L_AP + 128}")
        a("s_waitcnt vmcnt(6) lgkmcnt(15)")
        ohl = []
        for k in range(8):
            ohl.append(f"v_lshrrev_b32 v{OH+k}, v{vSh}, v{OH+k}")
        for k in range(8):
            ohl.append(f"v_and_b32 v{OH+k}, v{vM1}, v{OH+k}")
        for k in range(8):
            ohl.append(f"v_mul_u32_u24 v{OH+k}, v{vB1}, v{OH+k}")
        ohl.append(f"v_add_u32 v{vRecA}, 256, v{vRecA}")
        ohl.append(f"v_add_u32 v{vDlA}, 128, v{vDlA}")
        ohl.append(f"v_add_u32 v{vMkA}, 64, v{vMkA}")
        gc = gchain(b, 0, G)
        merge(ohl, gc[:4])
        a("s_waitcnt vmcnt(5)")
        gc[4]()
        a("s_waitcnt lgkmcnt(0)")
        merge(valu_g(G), hchain(b, 0) + gchain(b, 1, G1))
        pc(G)
        merge(valu_g(G1), rchain(0, G) + hchain(b, 1))
        pc(G1)
        for f in rchain(1, G1):
            f()

    a.label("LOOP")
    INLOOP[0] = True
    for b in (1, 0):
        step(b)
        a(f"s_sub_u32 s{s_NS}, s{s_NS}, 1")
        a(f"s_cmp_eq_u32 s{s_NS}, 0")
        if b == 1:
            a.branch("s_cbranch_scc1 LOOP_DONE")
        else:
            a.branch("s_cbranch_scc0 LOOP")
    a.label("LOOP_DONE")
    INLOOP[0] = False
    a("s_waitcnt vmcnt(0) lgkmcnt(0)")
    a(f"s_add_u32 s{s_R}, s{s_R}, {QCAP}")
    a(f"s_cmp_ge_u32 s{s_R}, s{s_mx}")
    a.branch("s_cbranch_scc1 EPILOGUE")
    a("s_barrier")
    load_slots()
    a("s_waitcnt vmcnt(0)")
    a.branch("s_branch ROUND")

    a.label("EPILOGUE")
    a("s_waitcnt vmcnt(0) lgkmcnt(0)")
    if EXP in ("nogather", "nox"):
        a(f"s_mov_b32 s{SX+2}, {N*128}")
    WUt = WB
    XD = WV
    VO = WV + 16
    XO = GB
    a(f"v_lshlrev_b32 v{vtmp+2}, 4, v{vL}")
    for k in range(8):
        if k % 4 == 0:
            a(f"s_mov_b32 s{s_tmp}, {OFF_WU + k*1024}")
        a(f"buffer_load_dwordx4 {vr(WUt+4*k,4)}, v{vtmp+2}, s[{SW}:{SW+3}], s{s_tmp} offen offset:{(k%4)*1024}")
    a(f"v_add_u32 v{vtmp+1}, s{s_ns}, v{vI}")
    a(f"v_lshl_add_u32 v{vtmp+1}, v{vtmp+1}, 7, v{vH64}")
    for s in range(4):
        a(f"buffer_load_dwordx4 {vr(XO+4*s,4)}, v{vtmp+1}, s[{SX}:{SX+3}], 0 offen offset:{16*s}")
    a(f"v_lshl_add_u32 v{vtmp}, v{vH}, 2, s{s_ns}")
    a(f"v_lshlrev_b32 v{vtmp}, 7, v{vtmp}")
    a(f"v_lshl_add_u32 v{vtmp}, v{vI}, 2, v{vtmp}")
    for r in range(16):
        row = 8 * (r >> 2) + (r & 3)
        a(f"buffer_load_dword v{XD+r}, v{vtmp}, s[{SX}:{SX+3}], 0 offen offset:{row*128}")
    a(f"v_mov_b32 v{vtmp+3}, {BIG}")
    a(f"v_lshlrev_b32 v{vtmp+1}, 2, v{vH}")
    for r in range(16):
        row = 8 * (r >> 2) + (r & 3)
        a(f"v_cmp_gt_u32 vcc, {GN-row if GN-row>0 else 0}, v{vtmp+1}")
        a(f"v_add_u32 v{VO+r}, {row*128}, v{vtmp}")
        a(f"v_cndmask_b32 v{VO+r}, v{vtmp+3}, v{VO+r}, vcc")
    a(f"v_mov_b32 v{vtmp+3}, 0x358637bd")
    for k in range(32):
        a(f"v_add_f32 v{DEN+k}, v{vtmp+3}, v{DEN+k}")
    for k in range(32):
        a(f"v_rcp_f32 v{DEN+k}, v{DEN+k}")
    a("s_waitcnt vmcnt(16)")
    for c in range(2):
        d = G if c == 0 else H
        for s in range(4):
            mfma32(a, d, XO + 4 * s, WUt + 4 * (2 * s + c), "0" if s == 0 else vr(d, 16))
    for c in range(2):
        d = G if c == 0 else H
        for r in range(16):
            a(f"v_fma_f32 v{d+r}, v{NUM+16*c+r}, v{DEN+16*c+r}, v{d+r}")
        for r in range(16):
            a(f"v_max_f32 v{d+r}, 0, v{d+r}")
    a("s_waitcnt vmcnt(0)")
    for r in range(16):
        a(f"v_lshlrev_b32 v{G1}, 16, v{XD+r}")
        a(f"v_and_b32 v{G1+1}, 0xffff0000, v{XD+r}")
        a(f"v_add_f32 v{G1}, v{G1}, v{G+r}")
        a(f"v_add_f32 v{G1+1}, v{G1+1}, v{H+r}")
        a(f"v_cvt_pk_bf16_f32 v{XD+r}, v{G1}, v{G1+1}")
        a(f"buffer_store_dword v{XD+r}, v{VO+r}, s[{SO}:{SO+3}], 0 offen")
    if X2 == "tl":
        a("s_waitcnt vmcnt(0) lgkmcnt(0)")
        a("s_memrealtime s[62:63]")
        a("s_waitcnt lgkmcnt(0)")
        srd(a, 52, 34, 35, 65536, (128 << 20) + 65536)
        a(f"s_lshl_b32 s{s_tmp}, s{s_G}, 3")
        a(f"v_mov_b32 v1, s{s_tmp}")
        a("v_mov_b32 v2, s60")
        a("v_mov_b32 v3, s62")
        a("buffer_store_dwordx2 v[2:3], v1, s[52:55], 0 offen")
    if X2 == "pro":
        a(f"s_lshr_b32 s84, s{s_G}, 3")
        a(f"s_cmp_lg_u32 s84, 37")
        a.branch("s_cbranch_scc1 MAIN_END")
        a("s_load_dwordx2 s[80:81], s[0:1], 80")
        a("s_waitcnt lgkmcnt(0)")
        a("s_mov_b32 s82, 256")
        a("s_mov_b32 s83, 0x00020000")
        a(f"s_lshl_b32 s85, s{s_wv}, 5")
        for k in range(7):
            a(f"s_sub_u32 s84, s{62+2*k}, s60")
            a(f"v_mov_b32 v{RC}, s84")
            a(f"v_mov_b32 v{RC+1}, {4*k}")
            a(f"buffer_store_dword v{RC}, v{RC+1}, s[80:83], s85 offen")
        a("s_waitcnt vmcnt(0)")
    a.label("MAIN_END")
    a("s_endpgm")
    return a.text()


def kd(name, vgpr, sgpr):
    acc = (vgpr + 3) // 4 * 4
    return f""".amdhsa_kernel {name}
  .amdhsa_next_free_vgpr {vgpr}
  .amdhsa_next_free_sgpr {sgpr}
  .amdhsa_accum_offset {acc}
  .amdhsa_group_segment_fixed_size 0
  .amdhsa_kernarg_size 96
  .amdhsa_user_sgpr_count 2
  .amdhsa_user_sgpr_kernarg_segment_ptr 1
  .amdhsa_system_sgpr_workgroup_id_x 1
.end_amdhsa_kernel
"""


def main():
    out = HEADER
    out += f"; @launch kernel=prep_kernel grid=({P+1},1,1) block=(1024,1,1) lds={PREP_LDS}\n"
    out += f"; @launch kernel=main_kernel grid=({NWG},1,1) block=({64*WPW},1,1) lds={LDS_TOTAL}\n"
    out += '.amdgcn_target "amdgcn-amd-amdhsa--gfx950"\n.text\n'
    out += gen_prep()
    out += gen_main()
    out += '.section .rodata,"a"\n.p2align 6\n'
    out += kd("prep_kernel", 64, 64)
    out += ".p2align 6\n"
    out += kd("main_kernel", 256, 96)
    path = sys.argv[1] if len(sys.argv) > 1 else "gather_scatter__edge_featured_mpnn_gatedgcn__graph.s"
    open(path, "w").write(out)


if __name__ == "__main__":
    main()
```
